```python
import torch

def _softmax(x, axis=-1):
    return torch.softmax(x, dim=axis)
def _gelu(x):
    return torch.nn.functional.gelu(x, approximate="tanh")
def _silu(x):
    return torch.nn.functional.silu(x)
def _sigmoid(x):
    return torch.sigmoid(x)
def _layernorm(x, axis=-1, eps=1e-5):
    m = x.mean(dim=axis, keepdim=True)
    v = x.var(dim=axis, keepdim=True, unbiased=False)
    return (x - m) / torch.sqrt(v + eps)
def _scatter_add(tgt, idx, src, axis=0):
    return tgt.clone().index_add_(axis, idx, src)
def _segment_sum(src, seg, n):
    out = torch.zeros((n,) + src.shape[1:], dtype=src.dtype)
    return out.index_add_(0, seg, src)
def _pad(x, pw):
    flat = tuple(v for pair in reversed(pw) for v in pair)
    return torch.nn.functional.pad(x, flat)

kernel_name = 'parallel_sum__gqa_block_cached__glu_gated_reglu__decode'

def setup_inputs():

    _w = (lambda a: (lambda t: t.to(torch.bfloat16) if t.is_floating_point() else t)(torch.as_tensor(a)))
    def _A_setup():
        B, Sq, D = 1, 1, 448
        Hq, Hkv, Sk, Dh = 16, 8, 65536, 256
        assert Hq % Hkv == 0, (Hq, Hkv)
        return {
            "x": _w((lambda *s: torch.randn(*s, dtype=torch.bfloat16) * 0.05)(B, Sq, D)),
            "k_cache": _w((lambda *s: torch.randn(*s, dtype=torch.bfloat16) * 3.2)(B, Hkv, Sk, Dh)),
            "v_cache": _w((lambda *s: torch.randn(*s, dtype=torch.bfloat16) * 1.6)(B, Hkv, Sk, Dh)),
            "wq": _w((lambda *s: torch.randn(*s, dtype=torch.bfloat16) * 3.2)(D, Hq * Dh) * (D ** -0.5)),
            "wo": _w((lambda *s: torch.randn(*s, dtype=torch.bfloat16) * 1.6)(Hq * Dh, D) * ((Hq * Dh) ** -0.5)),
        }
    _A_in = _A_setup()

    def _B_setup():
        B, S, D, F = 1, 1, 448, 1792
        return {
            "x": _w((lambda *s: torch.randn(*s, dtype=torch.bfloat16) * 0.05)(B, S, D)),
            "W_gate": _w((lambda *s: torch.randn(*s, dtype=torch.bfloat16) * 1.6)(D, F) * (2.0 / D) ** 0.5),
            "W_up": _w((lambda *s: torch.randn(*s, dtype=torch.bfloat16) * 1.6)(D, F) * (2.0 / D) ** 0.5),
            "W_down": _w((lambda *s: torch.randn(*s, dtype=torch.bfloat16) * 1.6)(F, D) * (1.0 / F) ** 0.5),
        }
    _B_in = _B_setup()

    return {
        "A_x": _A_in["x"],
        "A_k_cache": _A_in["k_cache"],
        "A_v_cache": _A_in["v_cache"],
        "A_wq": _A_in["wq"],
        "A_wo": _A_in["wo"],
        "B_x": _B_in["x"],
        "B_W_gate": _B_in["W_gate"],
        "B_W_up": _B_in["W_up"],
        "B_W_down": _B_in["W_down"],
    }

def reference(A_x, A_k_cache, A_v_cache, A_wq, A_wo, B_x, B_W_gate, B_W_up, B_W_down):
    def _A_ref(x, k_cache, v_cache, wq, wo):
        B, Sq, D = x.shape
        Hq, Dh = 16, 256
        Hkv = k_cache.shape[1]
        rep = Hq // Hkv
        q = (lambda x, *d: x.permute(*d))((x @ wq).reshape(B, Sq, Hq, Dh), 0, 2, 1, 3)
        k = (lambda x, n, axis: torch.repeat_interleave(x, n, dim=axis))(k_cache, rep, axis=1)
        v = (lambda x, n, axis: torch.repeat_interleave(x, n, dim=axis))(v_cache, rep, axis=1)
        scores = torch.einsum("bhqd,bhkd->bhqk", q, k) * (Dh ** -0.5)
        p = _softmax(scores, axis=-1)
        o = torch.einsum("bhqk,bhkd->bhqd", p, v)
        return (lambda x, *d: x.permute(*d))(o, 0, 2, 1, 3).reshape(B, Sq, Hq * Dh) @ wo

    def _B_ref(x, W_gate, W_up, W_down):
        gate = torch.einsum("bsd,df->bsf", x, W_gate)
        up = torch.einsum("bsd,df->bsf", x, W_up)
        gate = gate * (lambda x, dt: x.to(dt))(gate > 0, gate.dtype)
        h = gate * up
        return torch.einsum("bsf,fd->bsd", h, W_down)

    x = A_x
    xn = _layernorm(x, axis=-1)
    return x + _A_ref(xn, A_k_cache, A_v_cache, A_wq, A_wo) + _B_ref(xn, B_W_gate, B_W_up, B_W_down)
```

```python
import sys, math, struct

KN = "parallel_sum__gqa_block_cached__glu_gated_reglu__decode"

HEADER = """; Kernarg layout for this problem (96 bytes, ptrs only, base s[0:1]):
"""

WS_EPOCH = 0x0
WS_CT = 0x8000
WS_QG = 0x10000
WS_GG = 0x20000
WS_FA = 0x40000
WS_STAMP = 0x100000
WS_PG = 0x200000
WS_FB = 0x400000

L_Q = 0x0000
L_ST = 0x0410
L_FIN = 0x0480
L_B = 0x0500
L_XN = 0x0800
L_RED = 0x1000
L_HEAD = 0x0400
L_QUE = 0x3000
LDS_BYTES = 0x4800
EMPTY = 0xFFFFFFFF

TILES = 1024
LIMIT = TILES * 8192
SC = math.log2(math.e) / 16.0
MAXSPIN = 1 << 16


def f2u(f):
    return struct.unpack("<I", struct.pack("<f", f))[0]


class A:
    def __init__(self):
        self.L = []
        self.n = 0

    def __call__(self, s):
        for line in s.strip("\n").split("\n"):
            line = line.strip()
            self.L.append(line if line.endswith(":") else "  " + line)

    def label(self, p="L"):
        self.n += 1
        return f"{p}_{self.n}"

    def text(self):
        return "\n".join(self.L) + "\n"


def gen(G=2, G0=6, streamers=(1, 2), stamps=False, kflags="nt", vflags="nt", sleep_mid=16, sleep_q=1, sleep_tail=1,
        wflags="", a0mode="issue", prio=True, pfi=None, exp="", dyn=True, NPRE=64, LA=6, sleep_feed=4, roll=True):
    a = A()
    assert G <= G0 <= 13 and (G0 <= 7 or pfi is not None)
    NS = len(streamers)
    sX, sKp, sVp, sWq, sWo, sWg, sWu, sWd, sOut, sDbg, sWs = 4, 6, 8, 10, 12, 16, 18, 20, 22, 24, 26
    sK, sV, sR0, sR1 = 28, 32, 36, 40
    sKap, sC, sWave, sTag, sE = 44, 45, 46, 47, 48
    sT = 49
    sQ = 56
    sPM = 64
    sSpin = 66
    sCB = 67
    sSave = 68
    sSt = 70
    sA1, sA2 = 92, 93
    sC1 = 94
    sJ = 95
    sCT = 96
    sNx, sCur = 100, 101
    vLane, vKoff, vVoff = 1, 2, 3
    vMask = 4
    vS = 8
    vO = 12
    vM, vL = 20, 21
    vT = 22
    vQ = 32
    vP = 64
    vIW = 80
    vW = 144
    vX = 8
    vA = 30
    vZ = 29
    vE, vAd, vTk, vOne, vHd = 80, 81, 82, 83, 84

    def stamp(i):
        if stamps:
            a(f"s_memrealtime s[{sSt+2*i}:{sSt+2*i+1}]")

    def srd(s, base, off_s=None, off_imm=0, size=None, size_s=None):
        if off_s is not None:
            a(f"s_add_u32 s{s}, s{base}, s{off_s}")
            a(f"s_addc_u32 s{s+1}, s{base+1}, 0")
        elif off_imm:
            a(f"s_add_u32 s{s}, s{base}, {off_imm}")
            a(f"s_addc_u32 s{s+1}, s{base+1}, 0")
        else:
            a(f"s_mov_b32 s{s}, s{base}")
            a(f"s_mov_b32 s{s+1}, s{base+1}")
        if size_s is not None:
            a(f"s_mov_b32 s{s+2}, s{size_s}")
        else:
            a(f"s_mov_b32 s{s+2}, {size}")
        a(f"s_mov_b32 s{s+3}, 0x00020000")

    def xrow_reduce(v, t, op):
        a(f"v_mov_b32 v{t}, v{v}")
        a("s_nop 1")
        a(f"v_permlane16_swap_b32 v{v}, v{t}")
        a("s_nop 1")
        a(f"{op} v{v}, v{v}, v{t}")
        a(f"v_mov_b32 v{t}, v{v}")
        a("s_nop 1")
        a(f"v_permlane32_swap_b32 v{v}, v{t}")
        a("s_nop 1")
        a(f"{op} v{v}, v{v}, v{t}")

    def row16_reduce(regs, op="v_add_f32"):
        for ctl in ("quad_perm:[1,0,3,2]", "quad_perm:[2,3,0,1]", "row_half_mirror", "row_mirror"):
            a("s_nop 1")
            for r in regs:
                a(f"{op}_dpp v{r}, v{r}, v{r} {ctl} row_mask:0xf bank_mask:0xf")

    def transposed_reduce(regs):
        n = len(regs) // 2
        a("s_nop 1")
        for i in range(n):
            a(f"v_permlane32_swap_b32 v{regs[i]}, v{regs[i+n]}")
        a("s_nop 1")
        for i in range(n):
            a(f"v_add_f32 v{regs[i]}, v{regs[i]}, v{regs[i+n]}")
        regs = regs[:n]
        n = n // 2
        a("s_nop 1")
        for i in range(n):
            a(f"v_permlane16_swap_b32 v{regs[i]}, v{regs[i+n]}")
        a("s_nop 1")
        for i in range(n):
            a(f"v_add_f32 v{regs[i]}, v{regs[i]}, v{regs[i+n]}")
        return regs[:n]

    def bf16_round(dst, src):
        a(f"v_cvt_pk_bf16_f32 v{dst}, v{src}, v{src}")
        a(f"v_lshlrev_b32 v{dst}, 16, v{dst}")

    def poll(loads, tagregs, tmp, lbl, sleep):
        L = a.label(lbl)
        Lok = a.label(lbl + "ok")
        a(f"s_mov_b32 s{sSpin}, 0")
        a(f"{L}:")
        loads()
        a("s_waitcnt vmcnt(0)")
        first = True
        for r in tagregs:
            if first:
                a(f"v_xor_b32 v{tmp}, s{sTag}, v{r}")
                first = False
            else:
                a(f"v_xor_b32 v{tmp+1}, s{sTag}, v{r}")
                a(f"v_or_b32 v{tmp}, v{tmp}, v{tmp+1}")
        a(f"v_cmp_ne_u32 vcc, 0, v{tmp}")
        a("s_nop 4")
        a(f"s_cbranch_vccz {Lok}")
        a(f"s_add_u32 s{sSpin}, s{sSpin}, 1")
        a(f"s_cmp_lt_u32 s{sSpin}, {MAXSPIN}")
        if sleep:
            a(f"s_sleep {sleep}")
        a(f"s_cbranch_scc1 {L}")
        a(f"{Lok}:")

    def publish48(acc, ws_off, t):
        q = vW
        for g in range(3):
            for i in range(3):
                k = 3 * g + i
                if k < 8:
                    a(f"v_mov_b32 v{q+4*g+i}, v{acc+k}")
                else:
                    a(f"v_mov_b32 v{q+4*g+i}, 0")
            a(f"v_mov_b32 v{q+4*g+3}, s{sTag}")
        srd(sR0, sWs, off_imm=ws_off, size=56 * 12288)
        a(f"v_mul_u32_u24 v{t}, 12288, v{vLane}")
        a(f"s_mul_i32 s{sT}, s2, 48")
        a(f"s_mov_b32 s{sSave}, -1")
        a(f"s_mov_b32 s{sSave+1}, 0x00ffffff")
        a(f"s_mov_b64 exec, s[{sSave}:{sSave+1}]")
        for g in range(3):
            a(f"buffer_store_dwordx4 v[{q+4*g}:{q+4*g+3}], v{t}, s[{sR0}:{sR0+3}], s{sT} offen offset:{16*g} sc1")
        a("s_mov_b64 exec, -1")

    ntile0 = (G0 + 1) // 2
    T = 2 * (G0 - G)
    n0 = T
    tau0 = n0 // 2
    F = (G + 1) // 2
    NSTAT = max(tau0 + F + 1, ntile0)
    S0 = 24 * ntile0 + (NSTAT - ntile0) * 8 * NS
    if not dyn:
        NPRE = (TILES - S0 + 7) // 8 + 16
    CT0 = S0 + 8 * NPRE

    a(f"{KN}_kernel:")
    a("s_cmp_ge_u32 s2, 256")
    a("s_cbranch_scc1 L_end")
    if stamps:
        for i in range(22):
            a(f"s_mov_b32 s{sSt+i}, 0")
    stamp(0)
    a("s_load_dwordx16 s[4:19], s[0:1], 0")
    a("s_load_dwordx8 s[20:27], s[0:1], 64")
    a(f"v_and_b32 v{vLane}, 63, v0")
    a(f"v_lshrrev_b32 v{vT}, 6, v0")
    a(f"s_bfe_u32 s{sKap}, s2, 0x30003")
    a(f"s_lshr_b32 s{sC}, s2, 6")
    a(f"s_lshl_b32 s{sC}, s{sC}, 3")
    a(f"s_and_b32 s{sJ}, s2, 7")
    a(f"s_add_u32 s{sC}, s{sC}, s{sJ}")
    a(f"v_readfirstlane_b32 s{sWave}, v{vT}")
    a(f"s_cmp_eq_u32 s{sWave}, 0")
    a("s_cbranch_scc1 L_helper1")
    a(f"v_and_b32 v{vT+1}, 15, v{vLane}")
    a(f"v_lshrrev_b32 v{vT+2}, 4, v{vLane}")
    a(f"v_lshlrev_b32 v{vKoff}, 9, v{vT+1}")
    a(f"v_lshl_add_u32 v{vKoff}, v{vT+2}, 4, v{vKoff}")
    a(f"v_lshlrev_b32 v{vVoff}, 11, v{vT+2}")
    a(f"v_lshl_add_u32 v{vVoff}, v{vT+1}, 4, v{vVoff}")
    a(f"s_lshl_b32 s{sT}, s{sKap}, 25")
    a(f"s_lshr_b32 s{sT+1}, s2, 6")
    a(f"s_lshl_b32 s{sT+1}, s{sT+1}, 23")
    a(f"s_add_u32 s{sT}, s{sT}, s{sT+1}")
    a(f"s_mul_i32 s{sA1}, s{sJ}, 3")
    a(f"s_add_u32 s{sA1}, s{sA1}, s{sWave}")
    a(f"s_sub_u32 s{sA1}, s{sA1}, 1")
    a(f"s_lshl_b32 s{sA1}, s{sA1}, 13")
    a(f"s_mov_b32 s{sQ}, s{sA1}")
    a("s_waitcnt lgkmcnt(0)")
    a(f"s_load_dword s{sE}, s[{sWs}:{sWs+1}], {WS_EPOCH}")
    srd(sK, sKp, off_s=sT, size=LIMIT)
    srd(sV, sVp, off_s=sT, size=LIMIT)
    a("s_barrier")

    koff = lambda j: j * 64
    voff = lambda j: (j >> 1) * 512 + (j & 1) * 256

    def sreg(slot, j):
        if 'vslots' in exp:
            r = 96 + slot * 32 + j * 4
            return f"v[{r}:{r+3}]"
        if slot < 8:
            r = slot * 32 + j * 4
            return f"a[{r}:{r+3}]"
        r = 96 + (slot - 8) * 32 + j * 4
        return f"v[{r}:{r+3}]"

    def issue_group(n_is_k, slot, soff):
        for j in range(8):
            if n_is_k:
                a(f"buffer_load_dwordx4 {sreg(slot,j)}, v{vKoff}, s[{sK}:{sK+3}], s{soff} offen offset:{koff(j)} {kflags}")
            else:
                a(f"buffer_load_dwordx4 {sreg(slot,j)}, v{vVoff}, s[{sV}:{sV+3}], s{soff} offen offset:{voff(j)} {vflags}")

    for n in range(G0):
        if n % 2 == 0 and n > 0:
            a(f"s_add_u32 s{sQ}, s{sQ}, {24*8192}")
        issue_group(n % 2 == 0, n, sQ)
        if pfi is not None and n >= pfi and n < G0 - 1:
            a(f"s_waitcnt vmcnt({8*pfi})")
    stamp(1)
    a(f"v_and_b32 v{vT+6}, 1, v{vLane}")
    a(f"v_cmp_eq_u32 vcc, 1, v{vT+6}")
    a(f"v_mov_b32 v{vT+4}, 0xffff")
    a(f"v_mov_b32 v{vT+5}, 0xffff0000")
    a(f"v_cndmask_b32 v{vT+4}, v{vT+4}, v{vT+5}, vcc")
    a(f"v_bfe_u32 v{vT+6}, v{vLane}, 1, 2")
    for j in range(4):
        a(f"v_cmp_eq_u32 vcc, {j}, v{vT+6}")
        a("s_nop 1")
        a(f"v_cndmask_b32 v{vMask+j}, 0, v{vT+4}, vcc")
    a(f"v_mov_b32 v{vM}, {hex(f2u(-1e30))}")
    a(f"v_mov_b32 v{vL}, 0")
    for i in range(8):
        a(f"v_mov_b32 v{vO+i}, 0")
    smask = sum(1 << w for w in streamers)
    a(f"s_lshr_b32 s{sT}, {smask}, s{sWave}")
    a(f"s_and_b32 s{sPM}, s{sT}, 1")
    a(f"s_mov_b32 s{sPM+1}, 0")
    a(f"s_lshl_b32 s{sT}, 1, s{sWave}")
    a(f"s_sub_u32 s{sT}, s{sT}, 1")
    a(f"s_and_b32 s{sT}, s{sT}, {smask}")
    a(f"s_bcnt1_i32_b32 s{sT}, s{sT}")
    a(f"s_mul_i32 s{sA2}, s{sJ}, {NS}")
    a(f"s_add_u32 s{sA2}, s{sA2}, s{sT}")
    a(f"s_add_u32 s{sA2}, s{sA2}, {24*ntile0}")
    a(f"s_lshl_b32 s{sA2}, s{sA2}, 13")
    a(f"s_cmp_eq_u32 s{sPM}, 1")
    a(f"s_cselect_b32 s{sA2}, s{sA2}, {LIMIT}")
    a(f"v_mov_b32 v{vHd}, {L_HEAD}")
    a(f"v_mov_b32 v{vOne}, 1")
    a(f"s_mov_b32 s{sC1}, {hex(f2u(SC))}")
    a("s_waitcnt lgkmcnt(0)")
    a(f"s_mul_i32 s{sTag}, s{sE}, 0x9E3779B1")
    a(f"s_add_u32 s{sTag}, s{sTag}, 0x7F4A7C15")
    a("s_branch L_barB")

    a("L_helper1:")
    if prio:
        a("s_setprio 3")
    t = vT
    a(f"s_mul_i32 s{sT+5}, s{sKap}, 14")
    a(f"s_add_u32 s{sT+5}, s{sT+5}, s{sC}")
    a(f"s_sub_u32 s{sT+5}, s{sT+5}, 16")
    a(f"s_cmp_ge_u32 s{sT+5}, 56")
    a(f"s_cselect_b32 s{sT+6}, 1, 0")
    a(f"s_mul_i32 s{sT}, s{sT+6}, 56")
    a(f"s_sub_u32 s{sT}, s{sT+5}, s{sT}")
    a(f"s_lshr_b32 s{sT}, s{sT}, 1")
    a(f"s_lshl_b32 s{sT}, s{sT}, 7")
    a(f"s_lshl_b32 s{sT+3}, s{sT+5}, 9")
    a(f"s_add_u32 s{sT+3}, s{sT+3}, {WS_GG}")
    a(f"s_and_b32 s{sT+4}, s{sT+5}, 1")
    a(f"s_mov_b32 s{sT+1}, 3584")
    a(f"s_cmp_lt_u32 s{sC}, 16")
    a("s_cbranch_scc0 L_unit_sel")
    a(f"s_lshl_b32 s{sT}, s{sKap}, 3")
    a(f"s_lshr_b32 s{sT+1}, s{sC}, 1")
    a(f"s_add_u32 s{sT}, s{sT}, s{sT+1}")
    a(f"s_lshl_b32 s{sT}, s{sT}, 7")
    a(f"s_lshl_b32 s{sT+3}, s{sKap}, 4")
    a(f"s_add_u32 s{sT+3}, s{sT+3}, s{sC}")
    a(f"s_lshl_b32 s{sT+3}, s{sT+3}, 9")
    a(f"s_add_u32 s{sT+3}, s{sT+3}, {WS_QG}")
    a(f"s_and_b32 s{sT+4}, s{sC}, 1")
    a(f"s_mov_b32 s{sT+1}, 8192")
    a("L_unit_sel:")
    a(f"s_mul_i32 s{sT+2}, s{sT+1}, 448")
    a(f"s_sub_u32 s{sT+2}, s{sT+2}, s{sT}")
    a(f"s_cmp_lt_u32 s{sC}, {0 if 'nounit' in exp else 30}")
    a(f"s_cselect_b32 s{sT+2}, s{sT+2}, 0")
    a(f"v_lshrrev_b32 v{t}, 3, v{vLane}")
    a(f"v_mul_lo_u32 v{t}, v{t}, s{sT+1}")
    a(f"v_and_b32 v{t+1}, 7, v{vLane}")
    a(f"v_lshl_add_u32 v{t}, v{t+1}, 4, v{t}")
    a(f"v_lshlrev_b32 v{t+2}, 1, v{vLane}")
    a(f"s_mul_i32 s{sQ}, s{sT+4}, 224")
    a(f"s_mul_i32 s{sQ}, s{sQ}, s{sT+1}")
    a(f"s_lshl_b32 s{sQ+1}, s{sT+1}, 3")
    a("s_waitcnt lgkmcnt(0)")
    a(f"s_load_dword s{sE}, s[{sWs}:{sWs+1}], {WS_EPOCH}")
    a(f"s_cmp_eq_u32 s{sT+6}, 1")
    a(f"s_cselect_b32 s{sR1}, s{sWu}, s{sWg}")
    a(f"s_cselect_b32 s{sR1+1}, s{sWu+1}, s{sWg+1}")
    a(f"s_cmp_lt_u32 s{sC}, 16")
    a(f"s_cselect_b32 s{sR1}, s{sWq}, s{sR1}")
    a(f"s_cselect_b32 s{sR1+1}, s{sWq+1}, s{sR1+1}")
    a(f"s_add_u32 s{sR1}, s{sR1}, s{sT}")
    a(f"s_addc_u32 s{sR1+1}, s{sR1+1}, 0")
    a(f"s_mov_b32 s{sR1+2}, s{sT+2}")
    a(f"s_mov_b32 s{sR1+3}, 0x00020000")
    srd(sR0, sX, size=896)
    for k in range(7):
        a(f"buffer_load_ushort v{vX+k}, v{t+2}, s[{sR0}:{sR0+3}], 0 offen offset:{128*k}")
    for i in range(28):
        a(f"buffer_load_dwordx4 v[{vW+4*i}:{vW+4*i+3}], v{t}, s[{sR1}:{sR1+3}], s{sQ} offen {wflags}")
        if i < 27:
            a(f"s_add_u32 s{sQ}, s{sQ}, s{sQ+1}")
    if a0mode == "issue":
        a("s_barrier")
    stamp(1)
    a("s_waitcnt lgkmcnt(0)")
    a(f"s_mul_i32 s{sTag}, s{sE}, 0x9E3779B1")
    a(f"s_add_u32 s{sTag}, s{sTag}, 0x7F4A7C15")
    a(f"s_cmp_eq_u32 s{sJ}, 0")
    a("s_cbranch_scc0 L_noctinit")
    a(f"s_lshr_b32 s{sE}, s2, 3")
    a(f"s_lshl_b32 s{sE}, s{sE}, 8")
    a(f"s_add_u32 s{sE}, s{sE}, {WS_CT}")
    srd(sCT, sWs, off_s=sE, size=8)
    a(f"v_mov_b32 v{vA}, {CT0}")
    a(f"v_mov_b32 v{vA+1}, s{sTag}")
    a(f"v_mov_b32 v{vZ}, 0")
    a("s_mov_b64 exec, 1")
    a(f"buffer_store_dwordx2 v[{vA}:{vA+1}], v{vZ}, s[{sCT}:{sCT+3}], 0 offen sc1")
    a("s_mov_b64 exec, -1")
    a("s_waitcnt vmcnt(29)")
    a("s_branch L_ctdone")
    a("L_noctinit:")
    a("s_waitcnt vmcnt(28)")
    a("L_ctdone:")
    a(f"v_lshlrev_b32 v{t+3}, 4, v{vLane}")
    a(f"v_mov_b32 v{vP}, -1")
    a(f"v_mov_b32 v{vP+1}, -1")
    a(f"v_mov_b32 v{vP+2}, -1")
    a(f"v_mov_b32 v{vP+3}, -1")
    for i in range(4):
        a(f"ds_write_b128 v{t+3}, v[{vP}:{vP+3}] offset:{L_QUE + 1024*i}")
    a(f"v_lshlrev_b32 v{t+3}, 2, v{vLane}")
    a(f"ds_write_b32 v{t+3}, v{vP} offset:{L_QUE + 4096}")
    a(f"ds_write_b32 v{t+3}, v{vP} offset:{L_QUE + 4096 + 256}")
    a(f"s_add_u32 s{sE}, s{sJ}, {S0}")
    for blk in range((NPRE + 63) // 64):
        a(f"v_lshlrev_b32 v{t+4}, 3, v{vLane}")
        a(f"v_add_u32 v{t+4}, {blk*512}, v{t+4}")
        a(f"v_add_u32 v{t+4}, s{sE}, v{t+4}")
        if (blk + 1) * 64 > NPRE:
            a(f"v_cmp_gt_u32 vcc, {NPRE - blk*64}, v{vLane}")
            a("s_nop 1")
            a(f"v_cndmask_b32 v{t+4}, v{vP}, v{t+4}, vcc")
        a(f"ds_write_b32 v{t+3}, v{t+4} offset:{L_QUE + 256*blk}")
    a(f"v_mov_b32 v{t+4}, 0")
    a(f"v_mov_b32 v{t+3}, {L_HEAD}")
    a(f"ds_write_b32 v{t+3}, v{t+4}")
    if 'noq' in exp:
        a(f"v_mov_b32 v{vM}, {hex(f2u(-1e30))}")
        a(f"v_mov_b32 v{vL}, 0")
        for i in range(8):
            a(f"v_mov_b32 v{vO+i}, 0")
        a("s_waitcnt vmcnt(0) lgkmcnt(0)")
        a("s_setprio 0")
        a("s_branch L_barB")
    for k in range(7):
        a(f"v_lshlrev_b32 v{vX+k}, 16, v{vX+k}")
    u = vQ
    a(f"v_add_f32 v{u}, v{vX}, v{vX+1}")
    for k in range(2, 7):
        a(f"v_add_f32 v{u}, v{u}, v{vX+k}")
    row16_reduce([u])
    a("s_nop 1")
    xrow_reduce(u, u + 1, "v_add_f32")
    a(f"v_mul_f32 v{u}, {hex(f2u(1.0/448))}, v{u}")
    a(f"v_sub_f32 v{u+2}, v{vX}, v{u}")
    a(f"v_mul_f32 v{u+3}, v{u+2}, v{u+2}")
    for k in range(1, 7):
        a(f"v_sub_f32 v{u+2}, v{vX+k}, v{u}")
        a(f"v_fmac_f32 v{u+3}, v{u+2}, v{u+2}")
    row16_reduce([u + 3])
    a("s_nop 1")
    xrow_reduce(u + 3, u + 1, "v_add_f32")
    a(f"v_mul_f32 v{u+3}, {hex(f2u(1.0/448))}, v{u+3}")
    bf16_round(u + 3, u + 3)
    a(f"v_add_f32 v{u+3}, {hex(f2u(1e-5))}, v{u+3}")
    bf16_round(u + 3, u + 3)
    a(f"v_sqrt_f32 v{u+3}, v{u+3}")
    a("s_nop 0")
    bf16_round(u + 3, u + 3)
    bf16_round(u, u)
    a(f"v_rcp_f32 v{u+4}, v{u+3}")
    a("s_nop 0")
    for k in range(7):
        d = vX + k
        a(f"v_sub_f32 v{d}, v{d}, v{u}")
        bf16_round(d, d)
        a(f"v_mul_f32 v{u+5}, v{d}, v{u+4}")
        a(f"v_fma_f32 v{d}, -v{u+5}, v{u+3}, v{d}")
        a(f"v_fma_f32 v{d}, v{d}, v{u+4}, v{u+5}")
        bf16_round(d, d)
    a(f"v_lshlrev_b32 v{t+3}, 2, v{vLane}")
    for k in range(7):
        a(f"ds_write_b32 v{t+3}, v{vX+k} offset:{L_XN + 256*k}")
    a(f"v_lshrrev_b32 v{t+3}, 3, v{vLane}")
    a(f"v_lshlrev_b32 v{t+3}, 2, v{t+3}")
    a(f"s_mul_i32 s{sQ}, s{sT+4}, 896")
    a(f"v_add_u32 v{t+3}, s{sQ}, v{t+3}")
    a("s_waitcnt lgkmcnt(0)")
    xr = vQ + 4
    for i in range(28):
        a(f"ds_read_b32 v{xr+i}, v{t+3} offset:{L_XN + 32*i}")
    acc = vP
    for i in range(8):
        a(f"v_mov_b32 v{acc+i}, 0")
    a("s_waitcnt lgkmcnt(0)")
    for i in range(28):
        a(f"s_waitcnt vmcnt({27-i})")
        a(f"v_lshrrev_b32 v{t+4}, 16, v{xr+i}")
        for d in range(4):
            w = vW + 4 * i + d
            a(f"v_dot2_f32_bf16 v{acc+2*d}, v{w}, v{t+4}, v{acc+2*d}")
            a(f"v_dot2_f32_bf16 v{acc+2*d+1}, v{w}, v{xr+i}, v{acc+2*d+1}")
    if a0mode == "landed":
        a("s_barrier")
    rem = transposed_reduce([acc + i for i in range(8)])
    a("s_nop 1")
    for r in rem:
        a(f"v_add_f32_dpp v{r}, v{r}, v{r} row_ror:8 row_mask:0xf bank_mask:0xf")
    a(f"v_mov_b32 v{acc+4}, v{rem[0]}")
    a(f"v_mov_b32 v{acc+5}, s{sTag}")
    a(f"v_mov_b32 v{acc+6}, v{rem[1]}")
    a(f"v_mov_b32 v{acc+7}, s{sTag}")
    a(f"v_and_b32 v{t+3}, 7, v{vLane}")
    a(f"v_lshlrev_b32 v{t+3}, 6, v{t+3}")
    a(f"v_lshrrev_b32 v{t+4}, 4, v{vLane}")
    a(f"v_lshl_add_u32 v{t+3}, v{t+4}, 4, v{t+3}")
    a(f"s_cmp_lt_u32 s{sC}, 30")
    a("s_cbranch_scc0 L_nopub")
    srd(sR0, sWs, off_s=sT + 3, size=512)
    a(f"s_mov_b32 s{sSave}, 0x00ff00ff")
    a(f"s_mov_b32 s{sSave+1}, 0x00ff00ff")
    a(f"s_mov_b64 exec, s[{sSave}:{sSave+1}]")
    a(f"buffer_store_dwordx4 v[{acc+4}:{acc+7}], v{t+3}, s[{sR0}:{sR0+3}], 0 offen sc1")
    a("s_mov_b64 exec, -1")
    a("L_nopub:")
    stamp(2)
    a(f"s_lshl_b32 s{sT}, s{sKap}, 13")
    a(f"s_add_u32 s{sT}, s{sT}, {WS_QG}")
    srd(sR0, sWs, off_s=sT, size=8192)
    a(f"v_lshlrev_b32 v{t}, 4, v{vLane}")
    a(f"s_mov_b32 s{sT+1}, 4096")
    qg = vW

    def qloads():
        for b in range(8):
            so = "0" if b < 4 else f"s{sT+1}"
            a(f"buffer_load_dwordx4 v[{qg+4*b}:{qg+4*b+3}], v{t}, s[{sR0}:{sR0+3}], {so} offen offset:{(b%4)*1024} sc1")
    if 'nogather' in exp:
        qloads()
        a("s_waitcnt vmcnt(0)")
    else:
        poll(qloads, [qg + 4 * b + k for b in range(8) for k in (1, 3)], t + 2, "L_pq", sleep_q)
    for b in range(8):
        a(f"v_permlane32_swap_b32 v{qg+4*b}, v{qg+4*b+2}")
    a("s_nop 1")
    for b in range(8):
        a(f"v_add_f32 v{qg+4*b}, v{qg+4*b}, v{qg+4*b+2}")
    for b in range(8):
        a(f"v_cvt_pk_bf16_f32 v{qg+4*b}, v{qg+4*b}, v{qg+4*b}")
    a(f"v_and_b32 v{t}, 31, v{vLane}")
    a(f"v_lshlrev_b32 v{t}, 2, v{t}")
    a(f"v_lshrrev_b32 v{t+1}, 5, v{vLane}")
    a(f"v_lshl_add_u32 v{t}, v{t+1}, 1, v{t}")
    for b in range(8):
        a(f"ds_write_b16 v{t}, v{qg+4*b} offset:{L_Q + 128*b}")
    a(f"v_mov_b32 v{vM}, {hex(f2u(-1e30))}")
    a(f"v_mov_b32 v{vL}, 0")
    for i in range(8):
        a(f"v_mov_b32 v{vO+i}, 0")
    a("s_waitcnt lgkmcnt(0)")
    if prio:
        a("s_setprio 0")
    a("L_barB:")
    a("s_barrier")
    stamp(3)
    a(f"s_cmp_lt_u32 s2, 56")
    a(f"s_cselect_b32 s{sCB}, s2, 255")
    a(f"s_cmp_eq_u32 s{sWave}, 0")
    a("s_cbranch_scc1 L_helper2")
    t = vT
    a(f"v_bfe_u32 v{t}, v{vLane}, 3, 1")
    a(f"v_lshlrev_b32 v{t}, 9, v{t}")
    a(f"v_lshrrev_b32 v{t+1}, 4, v{vLane}")
    a(f"v_lshl_add_u32 v{t}, v{t+1}, 4, v{t}")
    for j in range(8):
        a(f"ds_read_b128 v[{vQ+4*j}:{vQ+4*j+3}], v{t} offset:{L_Q + 64*j}")
    a("s_waitcnt lgkmcnt(0)")

    def qk(slot):
        for j in range(8):
            c = "0" if j == 0 else f"v[{vS}:{vS+3}]"
            a(f"v_mfma_f32_16x16x32_bf16 v[{vS}:{vS+3}], {sreg(slot,j)}, v[{vQ+4*j}:{vQ+4*j+3}], {c}")

    def softmax():
        t = vT
        if 'nosm' in exp:
            return
        a(f"v_cvt_pk_bf16_f32 v{t}, v{vS}, v{vS+1}")
        a(f"v_cvt_pk_bf16_f32 v{t+1}, v{vS+2}, v{vS+3}")
        a(f"v_lshlrev_b32 v{vS}, 16, v{t}")
        a(f"v_and_b32 v{vS+1}, 0xffff0000, v{t}")
        a(f"v_lshlrev_b32 v{vS+2}, 16, v{t+1}")
        a(f"v_and_b32 v{vS+3}, 0xffff0000, v{t+1}")
        a(f"v_max3_f32 v{t}, v{vS}, v{vS+1}, v{vS+2}")
        a(f"v_max_f32 v{t}, v{t}, v{vS+3}")
        xrow_reduce(t, t + 1, "v_max_f32")
        a(f"v_mul_f32 v{t}, s{sC1}, v{t}")
        a(f"v_max_f32 v{t}, v{t}, v{vM}")
        a(f"v_sub_f32 v{t+1}, v{vM}, v{t}")
        a(f"v_exp_f32 v{t+1}, v{t+1}")
        a(f"v_mov_b32 v{vM}, v{t}")
        for i in range(4):
            a(f"v_fma_f32 v{vS+i}, v{vS+i}, s{sC1}, -v{t}")
        for i in range(4):
            a(f"v_exp_f32 v{vS+i}, v{vS+i}")
        for i in range(8):
            a(f"v_mul_f32 v{vO+i}, v{vO+i}, v{t+1}")
        a(f"v_add_f32 v{t+2}, v{vS}, v{vS+1}")
        a(f"v_add_f32 v{t+3}, v{vS+2}, v{vS+3}")
        a(f"v_add_f32 v{t+2}, v{t+2}, v{t+3}")
        a(f"v_fma_f32 v{vL}, v{vL}, v{t+1}, v{t+2}")
        for i in range(4):
            a(f"v_cvt_pk_bf16_f32 v{t+2+i}, v{vS+i}, v{vS+i}")
        for i in range(4):
            for j in range(4):
                a(f"v_and_b32 v{vP+4*i+j}, v{t+2+i}, v{vMask+j}")

    def pv(slot):
        for i in range(4):
            for h in range(2):
                a(f"v_mfma_f32_16x16x32_bf16 v[{vO+4*h}:{vO+4*h+3}], {sreg(slot,i*2+h)}, v[{vP+4*i}:{vP+4*i+3}], v[{vO+4*h}:{vO+4*h+3}]")

    def static_tile(dst, tau):
        if tau < ntile0:
            a(f"s_add_u32 s{dst}, s{sA1}, {24*tau*8192}")
        else:
            a(f"s_add_u32 s{dst}, s{sA2}, {(tau-ntile0)*8*NS*8192}")

    slot_of_group = {n: n for n in range(G0)}
    issued = G0
    free = []
    treg = lambda tau: sQ + (tau % 8)
    got = set()

    def get_tile(tau):
        if tau not in got:
            got.add(tau)
            static_tile(treg(tau), tau)
    nissue = T - (G0 - G)
    issue_steps = set(2 * k + 1 for k in range(nissue))
    for n in range(n0):
        tau = n >> 1
        if n % 2 == 0 and tau >= ntile0:
            a(f"s_cmp_ge_u32 s{treg(tau)}, {LIMIT}")
            a("s_cbranch_scc1 L_loopend")
        a(f"s_waitcnt vmcnt({min(63, (issued-n-1)*8)})")
        if n % 2 == 0:
            qk(slot_of_group[n])
        else:
            a("s_nop 1")
            pv(slot_of_group[n])
        free.append(slot_of_group[n])
        if n in issue_steps:
            get_tile(issued >> 1)
            sl = free.pop(0)
            slot_of_group[issued] = sl
            issue_group(issued % 2 == 0, sl, treg(issued >> 1))
            issued += 1
        if n % 2 == 0:
            a("s_nop 7")
            softmax()
    assert issued == n0 + G
    sOf = sQ
    for i in range(F):
        get_tile(tau0 + i)
    for i in range(F):
        a(f"s_mov_b32 s{sT+i}, s{treg(tau0+i)}")
    for i in range(F):
        a(f"s_mov_b32 s{sOf+i}, s{sT+i}")
    static_tile(sT, tau0 + F)
    a(f"s_lshr_b32 s{sT}, s{sT}, 13")
    a(f"v_mov_b32 v{vE}, s{sT}")
    stamp(4)
    period_tiles = 1 if G == 2 else (G // 2 if G % 2 == 0 else G)
    slot_of = lambda n: slot_of_group[n0 + ((n - n0) % G)]
    W = 8 * G - 1
    empties = []

    def decode(idx):
        a("s_waitcnt lgkmcnt(0)")
        a(f"v_readfirstlane_b32 s{sT}, v{vE}")
        a("s_nop 0")
        a(f"s_cmp_eq_u32 s{sT}, -1")
        a(f"s_cbranch_scc1 L_empty{idx}")
        a(f"L_entryok{idx}:")
        a(f"s_min_u32 s{sT}, s{sT}, {TILES}")
        a(f"s_lshl_b32 s{sOf+F}, s{sT}, 13")
        empties.append(idx)

    def take_ticket():
        a(f"s_mov_b64 exec, s[{sPM}:{sPM+1}]")
        a(f"ds_add_rtn_u32 v{vTk}, v{vHd}, v{vOne}")
        a("s_mov_b64 exec, -1")

    def read_entry():
        a(f"s_mov_b64 exec, s[{sPM}:{sPM+1}]")
        a(f"v_lshlrev_b32 v{vTk}, 2, v{vTk}")
        a(f"ds_read_b32 v{vE}, v{vTk} offset:{L_QUE}")
        a(f"v_mov_b32 v{vAd}, v{vTk}")
        a("s_mov_b64 exec, -1")

    def ld(isk, slot, j, soff):
        if isk:
            a(f"buffer_load_dwordx4 {sreg(slot,j)}, v{vKoff}, s[{sK}:{sK+3}], s{soff} offen offset:{koff(j)} {kflags}")
        else:
            a(f"buffer_load_dwordx4 {sreg(slot,j)}, v{vVoff}, s[{sV}:{sV+3}], s{soff} offen offset:{voff(j)} {vflags}")

    a("L_loop:")
    for tl in range(period_tiles):
        n = n0 + 2 * tl
        a(f"s_cmp_ge_u32 s{sOf}, {LIMIT}")
        a("s_cbranch_scc1 L_loopend")
        if G % 2 == 0:
            decode(tl)
            take_ticket()
        else:
            take_ticket()
        m = n + G
        rel = (m >> 1) - (n >> 1)
        sl = slot_of(n)
        for j in range(8):
            a(f"s_waitcnt vmcnt({W})")
            c = "0" if j == 0 else f"v[{vS}:{vS+3}]"
            a(f"v_mfma_f32_16x16x32_bf16 v[{vS}:{vS+3}], {sreg(sl,j)}, v[{vQ+4*j}:{vQ+4*j+3}], {c}")
            ld(m % 2 == 0, sl, j, sOf + rel)
        a("s_nop 7")
        softmax()
        n += 1
        m = n + G
        rel = (m >> 1) - (n >> 1)
        sl = slot_of(n)
        if G % 2 == 0:
            a("s_waitcnt lgkmcnt(0)")
            read_entry()
        else:
            decode(tl)
            read_entry()
        for j in range(8):
            i, h = j >> 1, j & 1
            a(f"s_waitcnt vmcnt({W})")
            a(f"v_mfma_f32_16x16x32_bf16 v[{vO+4*h}:{vO+4*h+3}], {sreg(sl,j)}, v[{vP+4*i}:{vP+4*i+3}], v[{vO+4*h}:{vO+4*h+3}]")
            ld(m % 2 == 0, sl, j, sOf + rel)
        for i in range(F):
            a(f"s_mov_b32 s{sOf+i}, s{sOf+i+1}")
    a("s_branch L_loop")
    for idx in empties:
        a(f"L_empty{idx}:")
        a(f"s_mov_b32 s{sSpin}, 0")
        a(f"L_emptyl{idx}:")
        a("s_sleep 1")
        a(f"ds_read_b32 v{vE}, v{vAd} offset:{L_QUE}")
        a("s_waitcnt lgkmcnt(0)")
        a(f"v_readfirstlane_b32 s{sT}, v{vE}")
        a("s_nop 0")
        a(f"s_cmp_eq_u32 s{sT}, -1")
        a(f"s_cbranch_scc0 L_entryok{idx}")
        a(f"s_add_u32 s{sSpin}, s{sSpin}, 1")
        a(f"s_cmp_lt_u32 s{sSpin}, {MAXSPIN*16}")
        a(f"s_cbranch_scc1 L_emptyl{idx}")
        a(f"s_mov_b32 s{sT}, {TILES}")
        a(f"s_branch L_entryok{idx}")
    a("L_loopend:")
    a("s_waitcnt vmcnt(0)")
    a("s_branch L_combine")

    a("L_helper2:")
    t = vT
    if 'nomlp' in exp:
        a("s_branch L_feed")
    a(f"s_lshl_b32 s{sT}, s{sKap}, 9")
    a(f"s_lshl_b32 s{sT+1}, s{sC}, 4")
    a(f"s_add_u32 s{sT}, s{sT}, s{sT+1}")
    a(f"s_mul_i32 s{sT}, s{sT}, 896")
    srd(sR0, sWo, off_s=sT, size=16 * 896)
    a(f"s_mul_i32 s{sT}, s2, {7*896}")
    srd(sR1, sWd, off_s=sT, size=7 * 896)
    a(f"v_lshlrev_b32 v{t}, 4, v{vLane}")
    wr = 144
    dr = 208
    for r in range(7):
        a(f"s_mov_b32 s{sT+1}, {r*896}")
        a(f"buffer_load_dwordx4 v[{dr+4*r}:{dr+4*r+3}], v{t}, s[{sR1}:{sR1+3}], s{sT+1} offen {wflags}")
    for r in range(16):
        a(f"s_mov_b32 s{sT+1}, {r*896}")
        a(f"buffer_load_dwordx4 v[{wr+4*r}:{wr+4*r+3}], v{t}, s[{sR0}:{sR0+3}], s{sT+1} offen {wflags}")
    if 'onlyw' in exp:
        a("s_waitcnt vmcnt(0)")
        a("s_branch L_feed")
    a(f"v_lshrrev_b32 v{t+1}, 2, v{vLane}")
    a(f"v_min_u32 v{t+1}, 6, v{t+1}")
    a(f"s_mul_i32 s{sT}, s2, 7")
    a(f"v_add_u32 v{t+1}, s{sT}, v{t+1}")
    a(f"v_lshrrev_b32 v{t+2}, 6, v{t+1}")
    a(f"v_and_b32 v{t+1}, 63, v{t+1}")
    a(f"v_lshlrev_b32 v{t+2}, 10, v{t+2}")
    a(f"v_lshl_add_u32 v{t+1}, v{t+1}, 3, v{t+2}")
    a(f"v_and_b32 v{t+2}, 1, v{vLane}")
    a(f"v_lshl_add_u32 v{t+1}, v{t+2}, 9, v{t+1}")
    a(f"v_bfe_u32 v{t+2}, v{vLane}, 1, 1")
    a(f"v_mul_u32_u24 v{t+2}, {56*512}, v{t+2}")
    a(f"v_add_u32 v{t+1}, v{t+1}, v{t+2}")
    srd(sR0, sWs, off_imm=WS_GG, size=112 * 512)
    hg = vP

    def hloads():
        a(f"buffer_load_dwordx2 v[{hg}:{hg+1}], v{t+1}, s[{sR0}:{sR0+3}], 0 offen sc1")
    poll(hloads, [hg + 1], t + 2, "L_ph", sleep_mid)
    a("s_nop 1")
    a(f"v_add_f32_dpp v{hg}, v{hg}, v{hg} quad_perm:[1,0,3,2] row_mask:0xf bank_mask:0xf")
    a("s_nop 1")
    a(f"v_mov_b32_dpp v{hg+1}, v{hg} quad_perm:[2,3,0,1] row_mask:0xf bank_mask:0xf")
    bf16_round(hg, hg)
    bf16_round(hg + 1, hg + 1)
    a(f"v_max_f32 v{hg}, 0, v{hg}")
    a(f"v_mul_f32 v{hg}, v{hg}, v{hg+1}")
    bf16_round(hg, hg)
    a("s_nop 0")
    for i in range(7):
        a(f"v_readlane_b32 s{sQ+i}, v{hg}, {4*i}")
    for i in range(7):
        a(f"s_lshr_b32 s{sT+i}, s{sQ+i}, 16")
    acc = vP + 4
    for i in range(7):
        for d in range(4):
            w = dr + 4 * i + d
            c0 = "0" if i == 0 else f"v{acc+2*d}"
            c1 = "0" if i == 0 else f"v{acc+2*d+1}"
            a(f"v_dot2_f32_bf16 v{acc+2*d}, v{w}, s{sT+i}, {c0}")
            a(f"v_dot2_f32_bf16 v{acc+2*d+1}, v{w}, s{sQ+i}, {c1}")
    a(f"s_mov_b32 s{sT}, 0x05040100")
    a(f"s_mov_b32 s{sT+1}, 0x07060302")
    for pr in range(8):
        r0 = wr + (2 * pr) * 4
        r1 = r0 + 4
        for d in range(4):
            o = vIW + pr * 8 + 2 * d
            a(f"v_perm_b32 v{o}, v{r1+d}, v{r0+d}, s{sT}")
            a(f"v_perm_b32 v{o+1}, v{r1+d}, v{r0+d}, s{sT+1}")
    if 'nofbpub' in exp:
        a("s_branch L_feed")
    publish48(acc, WS_FB, t)
    if 'nofbg' in exp:
        a("s_branch L_feed")
    a(f"s_cmp_lt_u32 s{sCB}, 56")
    a("s_cbranch_scc0 L_feed")
    a(f"s_mul_i32 s{sT}, s{sCB}, 12288")
    a(f"s_add_u32 s{sT}, s{sT}, {WS_FB}")
    srd(sR0, sWs, off_s=sT, size=12288)
    a(f"v_mul_u32_u24 v{t}, 48, v{vLane}")
    fb = 144

    def fbloads():
        for k in range(4):
            a(f"s_mov_b32 s{sT+2}, {k*3072}")
            for g in range(3):
                r = fb + (k * 3 + g) * 4
                a(f"buffer_load_dwordx4 v[{r}:{r+3}], v{t}, s[{sR0}:{sR0+3}], s{sT+2} offen offset:{16*g} sc1")
    poll(fbloads, [fb + 4 * i + 3 for i in range(12)], t + 2, "L_pfb", sleep_mid)
    acc = vP
    for c in range(8):
        g, i = c // 3, c % 3
        a(f"v_add_f32 v{acc+c}, v{fb+(0*3+g)*4+i}, v{fb+(1*3+g)*4+i}")
        a(f"v_add_f32 v{t+2}, v{fb+(2*3+g)*4+i}, v{fb+(3*3+g)*4+i}")
        a(f"v_add_f32 v{acc+c}, v{acc+c}, v{t+2}")
    rem = transposed_reduce([acc + i for i in range(8)])
    row16_reduce(rem)
    a(f"v_lshrrev_b32 v{t}, 4, v{vLane}")
    a(f"v_lshlrev_b32 v{t}, 3, v{t}")
    a(f"ds_write_b64 v{t}, v[{rem[0]}:{rem[1]}] offset:{L_B}")
    a("s_waitcnt lgkmcnt(0)")
    a("L_feed:")
    if dyn:
        t = vT
        sF, sN = sQ, sQ + 1
        a(f"s_lshr_b32 s{sT}, s2, 3")
        a(f"s_lshl_b32 s{sT}, s{sT}, 8")
        a(f"s_add_u32 s{sT}, s{sT}, {WS_CT}")
        srd(sCT, sWs, off_s=sT, size=8)
        a(f"v_mov_b32 v{vZ}, 0")
        a(f"v_mov_b32 v{t}, {L_HEAD}")
        a(f"s_mov_b32 s{sF}, {NPRE}")
        a(f"s_mov_b32 s{sSpin}, 0")
        a("L_feedloop:")
        a(f"ds_read_b32 v{t+1}, v{t}")
        a("s_waitcnt lgkmcnt(0)")
        a(f"v_readfirstlane_b32 s{sN}, v{t+1}")
        a(f"s_add_u32 s{sN}, s{sN}, {LA}")
        a(f"s_sub_i32 s{sN}, s{sN}, s{sF}")
        a(f"s_cmp_gt_i32 s{sN}, 0")
        a("s_cbranch_scc1 L_feedgo")
        a(f"s_sleep {sleep_feed}")
        a(f"s_add_u32 s{sSpin}, s{sSpin}, 1")
        a(f"s_cmp_lt_u32 s{sSpin}, {MAXSPIN*16}")
        a("s_cbranch_scc1 L_feedloop")
        a("s_branch L_feedend")
        a("L_feedgo:")
        a(f"s_min_u32 s{sN}, s{sN}, 8")
        a("L_feedretry:")
        a("s_mov_b64 exec, 1")
        a(f"v_mov_b32 v{vA}, s{sN}")
        a(f"v_mov_b32 v{vA+1}, 0")
        a(f"buffer_atomic_add_x2 v[{vA}:{vA+1}], v{vZ}, s[{sCT}:{sCT+3}], 0 offen sc0")
        a("s_mov_b64 exec, -1")
        a("s_waitcnt vmcnt(0)")
        a(f"v_readfirstlane_b32 s{sT+1}, v{vA+1}")
        a(f"v_readfirstlane_b32 s{sT}, v{vA}")
        a(f"s_cmp_eq_u32 s{sT+1}, s{sTag}")
        a("s_cbranch_scc1 L_feedok")
        a(f"s_add_u32 s{sSpin}, s{sSpin}, 1")
        a(f"s_cmp_lt_u32 s{sSpin}, {MAXSPIN*16}")
        a("s_cbranch_scc1 L_feedretry")
        a(f"s_mov_b32 s{sT}, {TILES}")
        a("L_feedok:")
        a(f"s_add_u32 s{sT+2}, s{sT}, s{sN}")
        a(f"s_cmp_ge_u32 s{sT+2}, {TILES}")
        a(f"s_cselect_b32 s{sN}, 32, s{sN}")
        a(f"v_add_u32 v{t+2}, s{sT}, v{vLane}")
        a(f"v_add_u32 v{t+3}, s{sF}, v{vLane}")
        a(f"v_lshlrev_b32 v{t+3}, 2, v{t+3}")
        a(f"s_lshl_b64 s[{sSave}:{sSave+1}], 1, s{sN}")
        a(f"s_sub_u32 s{sSave}, s{sSave}, 1")
        a(f"s_subb_u32 s{sSave+1}, s{sSave+1}, 0")
        a(f"s_mov_b64 exec, s[{sSave}:{sSave+1}]")
        a(f"ds_write_b32 v{t+3}, v{t+2} offset:{L_QUE}")
        a("s_mov_b64 exec, -1")
        a(f"s_add_u32 s{sF}, s{sF}, s{sN}")
        a(f"s_cmp_lt_u32 s{sT+2}, {TILES}")
        a("s_cbranch_scc1 L_feedloop")
        a("L_feedend:")
        a("s_waitcnt lgkmcnt(0)")

    a("L_combine:")
    stamp(5)
    t = vT
    xrow_reduce(vL, t, "v_add_f32")
    a(f"v_bfe_u32 v{t}, v{vLane}, 3, 1")
    a(f"v_lshlrev_b32 v{t+1}, 3, v{t}")
    a(f"s_lshl_b32 s{sT}, s{sWave}, 4")
    a(f"v_add_u32 v{t+1}, s{sT}, v{t+1}")
    a(f"ds_write_b64 v{t+1}, v[{vM}:{vM+1}] offset:{L_ST}")
    a("s_waitcnt lgkmcnt(0)")
    a("s_barrier")
    st = vP
    a(f"v_mov_b32 v{t+1}, 0")
    for w in range(4):
        a(f"ds_read_b128 v[{st+4*w}:{st+4*w+3}], v{t+1} offset:{L_ST+16*w}")
    a("s_waitcnt lgkmcnt(0)")
    R = vQ
    for h in range(2):
        a(f"v_max3_f32 v{R+2*h}, v{st+2*h}, v{st+4+2*h}, v{st+8+2*h}")
        a(f"v_max_f32 v{R+2*h}, v{R+2*h}, v{st+12+2*h}")
        for w in range(4):
            a(f"v_sub_f32 v{t+2+w}, v{st+4*w+2*h}, v{R+2*h}")
        for w in range(4):
            a(f"v_exp_f32 v{t+2+w}, v{t+2+w}")
        a("s_nop 0")
        a(f"v_mul_f32 v{R+2*h+1}, v{t+2}, v{st+2*h+1}")
        for w in range(1, 4):
            a(f"v_fmac_f32 v{R+2*h+1}, v{t+2+w}, v{st+4*w+2*h+1}")
    a(f"v_cmp_eq_u32 vcc, 1, v{t}")
    a("s_nop 1")
    a(f"v_cndmask_b32 v{t+2}, v{R}, v{R+2}, vcc")
    a(f"v_sub_f32 v{t+2}, v{vM}, v{t+2}")
    a(f"v_exp_f32 v{t+2}, v{t+2}")
    a("s_nop 0")
    for i in range(8):
        a(f"v_mul_f32 v{vO+i}, v{vO+i}, v{t+2}")
    a(f"v_lshlrev_b32 v{t+3}, 10, v{t}")
    a(f"v_lshrrev_b32 v{t+4}, 4, v{vLane}")
    a(f"v_lshl_add_u32 v{t+3}, v{t+4}, 7, v{t+3}")
    a(f"v_and_b32 v{t+4}, 7, v{vLane}")
    a(f"v_lshl_add_u32 v{t+3}, v{t+4}, 2, v{t+3}")
    a(f"s_lshl_b32 s{sT}, s{sWave}, 11")
    a(f"v_add_u32 v{t+3}, s{sT}, v{t+3}")
    for h in range(2):
        for ii in range(4):
            a(f"ds_write_b32 v{t+3}, v{vO+4*h+ii} offset:{L_RED + h*512 + ii*32}")
    a("s_waitcnt lgkmcnt(0)")
    a("s_barrier")
    a(f"v_lshlrev_b32 v{t}, 2, v0")
    for h in range(2):
        for w in range(4):
            a(f"ds_read_b32 v{st+4*h+w}, v{t} offset:{L_RED + w*2048 + h*1024}")
    a(f"s_lshl_b32 s{sT}, s{sKap}, 5")
    a(f"s_add_u32 s{sT}, s{sT}, s{sC}")
    a(f"s_lshl_b32 s{sT}, s{sT}, 13")
    a(f"s_add_u32 s{sT}, s{sT}, {WS_PG}")
    srd(sR0, sWs, off_s=sT, size=8192)
    a(f"v_lshlrev_b32 v{t}, 4, v0")
    a(f"s_mov_b32 s{sT+1}, 4096")
    a("s_waitcnt lgkmcnt(0)")
    g = vO
    for h in range(2):
        a(f"v_add_f32 v{st+4*h}, v{st+4*h}, v{st+4*h+1}")
        a(f"v_add_f32 v{st+4*h+2}, v{st+4*h+2}, v{st+4*h+3}")
        a(f"v_add_f32 v{g+4*h}, v{st+4*h}, v{st+4*h+2}")
        a(f"v_mov_b32 v{g+4*h+1}, v{R+2*h}")
        a(f"v_mov_b32 v{g+4*h+2}, v{R+2*h+1}")
        a(f"v_mov_b32 v{g+4*h+3}, s{sTag}")
    a(f"buffer_store_dwordx4 v[{g}:{g+3}], v{t}, s[{sR0}:{sR0+3}], 0 offen sc1")
    a(f"buffer_store_dwordx4 v[{g+4}:{g+7}], v{t}, s[{sR0}:{sR0+3}], s{sT+1} offen sc1")
    stamp(6)
    if 'notail' in exp:
        a("s_branch L_fin")
    a(f"s_cmp_eq_u32 s{sWave}, 0")
    a("s_cbranch_scc0 L_s1done")
    a(f"s_lshl_b32 s{sT}, s{sKap}, 18")
    a(f"s_lshl_b32 s{sT+1}, s{sC}, 8")
    a(f"s_add_u32 s{sT}, s{sT}, s{sT+1}")
    a(f"s_add_u32 s{sT}, s{sT}, {WS_PG}")
    srd(sR0, sWs, off_s=sT, size=32 * 8192)
    a(f"v_lshrrev_b32 v{t}, 4, v{vLane}")
    a(f"v_lshlrev_b32 v{t}, 13, v{t}")
    a(f"v_and_b32 v{t+1}, 15, v{vLane}")
    a(f"v_lshl_add_u32 v{t}, v{t+1}, 4, v{t}")
    pg = 160

    def ploads():
        for k in range(8):
            a(f"s_mov_b32 s{sT+2}, {k*32768}")
            a(f"buffer_load_dwordx4 v[{pg+4*k}:{pg+4*k+3}], v{t}, s[{sR0}:{sR0+3}], s{sT+2} offen sc1")
    poll(ploads, [pg + 4 * k + 3 for k in range(8)], t + 2, "L_pp", sleep_tail)
    stamp(7)
    a(f"v_max3_f32 v{t+1}, v{pg+1}, v{pg+5}, v{pg+9}")
    a(f"v_max3_f32 v{t+1}, v{t+1}, v{pg+13}, v{pg+17}")
    a(f"v_max3_f32 v{t+1}, v{t+1}, v{pg+21}, v{pg+25}")
    a(f"v_max_f32 v{t+1}, v{t+1}, v{pg+29}")
    xrow_reduce(t + 1, t + 2, "v_max_f32")
    for k in range(8):
        a(f"v_sub_f32 v{pg+4*k+1}, v{pg+4*k+1}, v{t+1}")
    for k in range(8):
        a(f"v_exp_f32 v{pg+4*k+1}, v{pg+4*k+1}")
    a("s_nop 0")
    a(f"v_mul_f32 v{t+3}, v{pg+1}, v{pg}")
    a(f"v_mul_f32 v{t+4}, v{pg+1}, v{pg+2}")
    for k in range(1, 8):
        a(f"v_fmac_f32 v{t+3}, v{pg+4*k+1}, v{pg+4*k}")
        a(f"v_fmac_f32 v{t+4}, v{pg+4*k+1}, v{pg+4*k+2}")
    xrow_reduce(t + 3, t + 2, "v_add_f32")
    xrow_reduce(t + 4, t + 2, "v_add_f32")
    a(f"v_rcp_f32 v{t+5}, v{t+4}")
    a("s_nop 0")
    a(f"v_mul_f32 v{t+6}, v{t+3}, v{t+5}")
    a(f"v_fma_f32 v{t+3}, -v{t+6}, v{t+4}, v{t+3}")
    a(f"v_fma_f32 v{t+3}, v{t+3}, v{t+5}, v{t+6}")
    a("s_nop 1")
    a(f"v_mov_b32_dpp v{t+4}, v{t+3} row_shl:1 row_mask:0xf bank_mask:0xf")
    a("s_nop 0")
    a(f"v_cvt_pk_bf16_f32 v{t+3}, v{t+3}, v{t+4}")
    a("s_nop 0")
    for i in range(8):
        a(f"v_readlane_b32 s{sQ+i}, v{t+3}, {2*i}")
    a("s_nop 1")
    acc = vP
    for pr in range(8):
        for c in range(8):
            c0 = "0" if pr == 0 else f"v{acc+c}"
            a(f"v_dot2_f32_bf16 v{acc+c}, v{vIW+pr*8+c}, s{sQ+pr}, {c0}")
    publish48(acc, WS_FA, t)
    a("L_s1done:")
    stamp(8)
    t = vT
    a(f"s_cmp_lt_u32 s{sCB}, 56")
    a("s_cbranch_scc0 L_fin")
    a(f"s_mul_i32 s{sT}, s{sCB}, 12288")
    a(f"s_add_u32 s{sT}, s{sT}, {WS_FA}")
    srd(sR0, sWs, off_s=sT, size=12288)
    a(f"v_mul_u32_u24 v{t}, 48, v0")
    fa = vQ

    def faloads():
        for g in range(3):
            a(f"buffer_load_dwordx4 v[{fa+4*g}:{fa+4*g+3}], v{t}, s[{sR0}:{sR0+3}], 0 offen offset:{16*g} sc1")
    poll(faloads, [fa + 3, fa + 7, fa + 11], t + 2, "L_pfa", sleep_tail)
    stamp(9)
    acc = vP
    for c in range(8):
        a(f"v_mov_b32 v{acc+c}, v{fa+(c//3)*4+(c%3)}")
    rem = transposed_reduce([acc + i for i in range(8)])
    row16_reduce(rem)
    a(f"v_lshrrev_b32 v{t}, 4, v{vLane}")
    a(f"v_lshlrev_b32 v{t}, 3, v{t}")
    a(f"s_lshl_b32 s{sT}, s{sWave}, 5")
    a(f"v_add_u32 v{t}, s{sT}, v{t}")
    a(f"ds_write_b64 v{t}, v[{rem[0]}:{rem[1]}] offset:{L_FIN}")
    a(f"s_lshl_b32 s{sT}, s{sCB}, 4")
    srd(sR0, sX, size=896)
    srd(sR1, sOut, size=896)
    a(f"v_and_b32 v{t}, 7, v{vLane}")
    a(f"v_lshlrev_b32 v{t+2}, 1, v{t}")
    a(f"buffer_load_ushort v{acc+5}, v{t+2}, s[{sR0}:{sR0+3}], s{sT} offen")
    a("s_waitcnt lgkmcnt(0)")
    a("s_barrier")
    a(f"s_cmp_eq_u32 s{sWave}, 0")
    a("s_cbranch_scc0 L_fin")
    a(f"v_lshlrev_b32 v{t+1}, 2, v{t}")
    for w in range(4):
        a(f"ds_read_b32 v{acc+w}, v{t+1} offset:{L_FIN+32*w}")
    a(f"ds_read_b32 v{acc+4}, v{t+1} offset:{L_B}")
    a("s_waitcnt vmcnt(0) lgkmcnt(0)")
    a(f"v_add_f32 v{acc}, v{acc}, v{acc+1}")
    a(f"v_add_f32 v{acc+2}, v{acc+2}, v{acc+3}")
    a(f"v_add_f32 v{acc}, v{acc}, v{acc+2}")
    bf16_round(acc, acc)
    bf16_round(acc + 4, acc + 4)
    a(f"v_lshlrev_b32 v{acc+5}, 16, v{acc+5}")
    a(f"v_add_f32 v{acc}, v{acc+5}, v{acc}")
    bf16_round(acc, acc)
    a(f"v_add_f32 v{acc}, v{acc}, v{acc+4}")
    a(f"v_cvt_pk_bf16_f32 v{acc}, v{acc}, v{acc}")
    a("s_mov_b64 exec, 0xff")
    a(f"buffer_store_short v{acc}, v{t+2}, s[{sR1}:{sR1+3}], s{sT} offen")
    a("s_mov_b64 exec, -1")
    a(f"s_cmp_eq_u32 s{sCB}, 0")
    a("s_cbranch_scc0 L_fin")
    srd(sR0, sWs, off_imm=WS_EPOCH, size=4)
    a(f"v_mov_b32 v{t}, 0")
    a(f"v_mov_b32 v{t+1}, s{sTag}")
    a("s_mov_b64 exec, 1")
    a(f"buffer_store_dword v{t+1}, v{t}, s[{sR0}:{sR0+3}], 0 offen")
    a("s_mov_b64 exec, -1")
    a("L_fin:")
    if stamps:
        stamp(10)
        a("s_waitcnt lgkmcnt(0)")
        a(f"s_lshl_b32 s{sT}, s2, 2")
        a(f"s_add_u32 s{sT}, s{sT}, s{sWave}")
        a(f"s_lshl_b32 s{sT}, s{sT}, 6")
        a(f"s_add_u32 s{sT}, s{sT}, {WS_STAMP}")
        srd(sR0, sWs, off_s=sT, size=64)
        a("v_mov_b32 v28, 0")
        a("s_mov_b64 exec, 1")
        for i in range(11):
            a(f"v_mov_b32 v27, s{sSt+2*i}")
            a(f"buffer_store_dword v27, v28, s[{sR0}:{sR0+3}], 0 offen offset:{4*i}")
            a("s_nop 1")
        a(f"s_getreg_b32 s{sT}, hwreg(HW_REG_XCC_ID)")
        a(f"v_mov_b32 v27, s{sT}")
        a(f"buffer_store_dword v27, v28, s[{sR0}:{sR0+3}], 0 offen offset:60")
    a("L_end:")
    a("s_endpgm")

    head = HEADER + f"; @launch grid=(256,1,1) block=(256,1,1) lds={LDS_BYTES}\n"
    head += '.amdgcn_target "amdgcn-amd-amdhsa--gfx950"\n.text\n'
    head += f".globl {KN}_kernel\n.p2align 8\n.type {KN}_kernel,@function\n"
    tail = f""".section .rodata,"a"
.p2align 6
.amdhsa_kernel {KN}_kernel
  .amdhsa_next_free_vgpr 512
  .amdhsa_next_free_sgpr 102
  .amdhsa_accum_offset 256
  .amdhsa_group_segment_fixed_size 0
  .amdhsa_kernarg_size 96
  .amdhsa_user_sgpr_count 2
  .amdhsa_user_sgpr_kernarg_segment_ptr 1
  .amdhsa_system_sgpr_workgroup_id_x 1
.end_amdhsa_kernel
"""
    return head + a.text() + tail


if __name__ == "__main__":
    import argparse
    ap = argparse.ArgumentParser()
    ap.add_argument("-o", default="k.s")
    ap.add_argument("--G0", type=int, default=6)
    ap.add_argument("--G", type=int, default=2)
    ap.add_argument("--streamers", default="1,2")
    ap.add_argument("--stamps", action="store_true")
    ap.add_argument("--pfi", type=int, default=None)
    ap.add_argument("--a0mode", default="issue")
    ap.add_argument("--exp", default="")
    ap.add_argument("--static", action="store_true")
    ap.add_argument("--sleep_mid", type=int, default=16)
    ap.add_argument("--sleep_tail", type=int, default=1)
    ap.add_argument("--NPRE", type=int, default=64)
    ap.add_argument("--wflags", default="nt")
    ap.add_argument("--noroll", action="store_true")
    ap.add_argument("--LA", type=int, default=6)
    args = ap.parse_args()
    s = gen(G=args.G, G0=args.G0, streamers=tuple(int(x) for x in args.streamers.split(",")), stamps=args.stamps, pfi=args.pfi,
            a0mode=args.a0mode, exp=args.exp, dyn=not args.static, sleep_mid=args.sleep_mid, sleep_tail=args.sleep_tail, NPRE=args.NPRE, LA=args.LA, wflags=args.wflags, roll=not args.noroll)
    open(args.o, "w").write(s)
```

```python
import sys, math, struct

KN = "parallel_sum__gqa_block_cached__glu_gated_reglu__decode"

HEADER = """; Kernarg layout for this problem (96 bytes, ptrs only, base s[0:1]):
"""

WS_EPOCH = 0x0
WS_CT = 0x8000
WS_QG = 0x10000
WS_GG = 0x20000
WS_FA = 0x40000
WS_STAMP = 0x100000
WS_PG = 0x200000
WS_FB = 0x400000

L_Q = 0x0000
L_ST = 0x0410
L_FIN = 0x0480
L_B = 0x0780
L_H = 0x0680
L_XN = 0x0800
L_RED = 0x1000
L_HEAD = 0x0400
L_QUE = 0x3000
LDS_BYTES = 0x4800
EMPTY = 0xFFFFFFFF

TILES = 1024
LIMIT = TILES * 8192
SC = math.log2(math.e) / 16.0
MAXSPIN = 1 << 16


def f2u(f):
    return struct.unpack("<I", struct.pack("<f", f))[0]


class A:
    def __init__(self):
        self.L = []
        self.n = 0

    def __call__(self, s):
        for line in s.strip("\n").split("\n"):
            line = line.strip()
            self.L.append(line if line.endswith(":") else "  " + line)

    def label(self, p="L"):
        self.n += 1
        return f"{p}_{self.n}"

    def text(self):
        return "\n".join(self.L) + "\n"


def gen(G=2, G0=6, streamers=(1, 2), stamps=False, kflags="nt", vflags="nt", sleep_mid=16, sleep_q=1, sleep_tail=1,
        wflags="", a0mode="issue", prio=True, pfi=None, exp="", dyn=True, NPRE=64, LA=6, sleep_feed=4, roll=True, NPM=48, GUK=14, DNR=16, codepf=False, qmask=False):
    a = A()
    assert G <= G0 <= 13 and (G0 <= 7 or pfi is not None)
    NS = len(streamers)
    sX, sKp, sVp, sWq, sWo, sWg, sWu, sWd, sOut, sDbg, sWs = 4, 6, 8, 10, 12, 16, 18, 20, 22, 24, 26
    sK, sV, sR0, sR1 = 28, 32, 36, 40
    sKap, sC, sWave, sTag, sE = 44, 45, 46, 47, 48
    sT = 49
    sQ = 56
    sPM = 64
    sSpin = 66
    sCB = 67
    sSave = 68
    sSt = 70
    sA1, sA2 = 92, 93
    sC1 = 94
    sJ = 95
    sCT = 96
    sNx, sCur = 100, 101
    vLane, vKoff, vVoff = 1, 2, 3
    vMask = 4
    vS = 8
    vO = 12
    vM, vL = 20, 21
    vT = 22
    vQ = 32
    vP = 64
    vIW = 80
    vW = 144
    vX = 8
    vA = 30
    vZ = 29
    vE, vAd, vTk, vOne, vHd = 80, 81, 82, 83, 84

    def stamp(i):
        if stamps:
            a(f"s_memrealtime s[{sSt+2*i}:{sSt+2*i+1}]")

    def srd(s, base, off_s=None, off_imm=0, size=None, size_s=None):
        if off_s is not None:
            a(f"s_add_u32 s{s}, s{base}, s{off_s}")
            a(f"s_addc_u32 s{s+1}, s{base+1}, 0")
        elif off_imm:
            a(f"s_add_u32 s{s}, s{base}, {off_imm}")
            a(f"s_addc_u32 s{s+1}, s{base+1}, 0")
        else:
            a(f"s_mov_b32 s{s}, s{base}")
            a(f"s_mov_b32 s{s+1}, s{base+1}")
        if size_s is not None:
            a(f"s_mov_b32 s{s+2}, s{size_s}")
        else:
            a(f"s_mov_b32 s{s+2}, {size}")
        a(f"s_mov_b32 s{s+3}, 0x00020000")

    def xrow_reduce(v, t, op):
        a(f"v_mov_b32 v{t}, v{v}")
        a("s_nop 1")
        a(f"v_permlane16_swap_b32 v{v}, v{t}")
        a("s_nop 1")
        a(f"{op} v{v}, v{v}, v{t}")
        a(f"v_mov_b32 v{t}, v{v}")
        a("s_nop 1")
        a(f"v_permlane32_swap_b32 v{v}, v{t}")
        a("s_nop 1")
        a(f"{op} v{v}, v{v}, v{t}")

    def row16_reduce(regs, op="v_add_f32"):
        for ctl in ("quad_perm:[1,0,3,2]", "quad_perm:[2,3,0,1]", "row_half_mirror", "row_mirror"):
            a("s_nop 1")
            for r in regs:
                a(f"{op}_dpp v{r}, v{r}, v{r} {ctl} row_mask:0xf bank_mask:0xf")

    def transposed_reduce(regs):
        n = len(regs) // 2
        a("s_nop 1")
        for i in range(n):
            a(f"v_permlane32_swap_b32 v{regs[i]}, v{regs[i+n]}")
        a("s_nop 1")
        for i in range(n):
            a(f"v_add_f32 v{regs[i]}, v{regs[i]}, v{regs[i+n]}")
        regs = regs[:n]
        n = n // 2
        a("s_nop 1")
        for i in range(n):
            a(f"v_permlane16_swap_b32 v{regs[i]}, v{regs[i+n]}")
        a("s_nop 1")
        for i in range(n):
            a(f"v_add_f32 v{regs[i]}, v{regs[i]}, v{regs[i+n]}")
        return regs[:n]

    def bf16_round(dst, src):
        a(f"v_cvt_pk_bf16_f32 v{dst}, v{src}, v{src}")
        a(f"v_lshlrev_b32 v{dst}, 16, v{dst}")

    def poll(loads, tagregs, tmp, lbl, sleep):
        L = a.label(lbl)
        Lok = a.label(lbl + "ok")
        a(f"s_mov_b32 s{sSpin}, 0")
        a(f"{L}:")
        loads()
        a("s_waitcnt vmcnt(0)")
        first = True
        for r in tagregs:
            if first:
                a(f"v_xor_b32 v{tmp}, s{sTag}, v{r}")
                first = False
            else:
                a(f"v_xor_b32 v{tmp+1}, s{sTag}, v{r}")
                a(f"v_or_b32 v{tmp}, v{tmp}, v{tmp+1}")
        a(f"v_cmp_ne_u32 vcc, 0, v{tmp}")
        a("s_nop 4")
        a(f"s_cbranch_vccz {Lok}")
        a(f"s_add_u32 s{sSpin}, s{sSpin}, 1")
        a(f"s_cmp_lt_u32 s{sSpin}, {MAXSPIN}")
        if sleep:
            a(f"s_sleep {sleep}")
        a(f"s_cbranch_scc1 {L}")
        a(f"{Lok}:")

    def poll_masked(nk, load_k, tags_k, tmp, lbl, sleep):
        L = a.label(lbl)
        Lok = a.label(lbl + "ok")
        sPend = sPM
        a(f"s_mov_b32 s{sSpin}, 0")
        a(f"s_mov_b32 s{sPend}, {(1 << nk) - 1}")
        a(f"{L}:")
        for k in range(nk):
            sk = a.label(lbl + "s")
            a(f"s_bitcmp1_b32 s{sPend}, {k}")
            a(f"s_cbranch_scc0 {sk}")
            load_k(k)
            a(f"{sk}:")
        a("s_waitcnt vmcnt(0)")
        for k in range(nk):
            tg = tags_k(k)
            if len(tg) == 1:
                a(f"v_cmp_ne_u32 vcc, s{sTag}, v{tg[0]}")
            else:
                a(f"v_xor_b32 v{tmp}, s{sTag}, v{tg[0]}")
                for r in tg[1:]:
                    a(f"v_xor_b32 v{tmp+1}, s{sTag}, v{r}")
                    a(f"v_or_b32 v{tmp}, v{tmp}, v{tmp+1}")
                a(f"v_cmp_ne_u32 vcc, 0, v{tmp}")
            a("s_nop 0")
            a("s_cmp_eq_u64 vcc, 0")
            a(f"s_cselect_b32 s{sPend+1}, {hex((~(1 << k)) & 0xffffffff)}, -1")
            a(f"s_and_b32 s{sPend}, s{sPend}, s{sPend+1}")
        a(f"s_cmp_eq_u32 s{sPend}, 0")
        a(f"s_cbranch_scc1 {Lok}")
        a(f"s_add_u32 s{sSpin}, s{sSpin}, 1")
        a(f"s_cmp_lt_u32 s{sSpin}, {MAXSPIN}")
        if sleep:
            a(f"s_sleep {sleep}")
        a(f"s_cbranch_scc1 {L}")
        a(f"{Lok}:")

    def publish48(acc, ws_off, t, nprod, sprod):
        q = vW
        for g in range(3):
            for i in range(3):
                k = 3 * g + i
                if k < 8:
                    a(f"v_mov_b32 v{q+4*g+i}, v{acc+k}")
                else:
                    a(f"v_mov_b32 v{q+4*g+i}, 0")
            a(f"v_mov_b32 v{q+4*g+3}, s{sTag}")
        a(f"s_mul_i32 s{sT}, s{sprod}, 2688")
        a(f"s_add_u32 s{sT}, s{sT}, {ws_off}")
        srd(sR0, sWs, off_s=sT, size=2688)
        a(f"v_lshlrev_b32 v{t}, 4, v{vLane}")
        a(f"s_mov_b32 s{sSave}, -1")
        a(f"s_mov_b32 s{sSave+1}, 0x00ffffff")
        a(f"s_mov_b64 exec, s[{sSave}:{sSave+1}]")
        for g in range(3):
            a(f"buffer_store_dwordx4 v[{q+4*g}:{q+4*g+3}], v{t}, s[{sR0}:{sR0+3}], 0 offen offset:{896*g} sc1")
        a("s_mov_b64 exec, -1")

    ntile0 = (G0 + 1) // 2
    T = 2 * (G0 - G)
    n0 = T
    tau0 = n0 // 2
    F = (G + 1) // 2
    NSTAT = max(tau0 + F + 1, ntile0)
    S0 = 24 * ntile0 + (NSTAT - ntile0) * 8 * NS
    if not dyn:
        NPRE = (TILES - S0 + 7) // 8 + 16
    if not dyn:
        NPM = NPRE
    NPM = min(NPM, NPRE)
    CT0 = S0 + 8 * NPRE
    CT0M = S0 + 8 * NPM + 7 * (NPRE - NPM)

    a(f"{KN}_kernel:")
    a("s_cmp_ge_u32 s2, 256")
    a("s_cbranch_scc1 L_end")
    if stamps:
        for i in range(22):
            a(f"s_mov_b32 s{sSt+i}, 0")
    stamp(0)
    a("s_load_dwordx16 s[4:19], s[0:1], 0")
    a("s_load_dwordx8 s[20:27], s[0:1], 64")
    a(f"v_and_b32 v{vLane}, 63, v0")
    a(f"v_lshrrev_b32 v{vT}, 6, v0")
    a(f"s_bfe_u32 s{sKap}, s2, 0x30003")
    a(f"s_lshr_b32 s{sC}, s2, 6")
    a(f"s_lshl_b32 s{sC}, s{sC}, 3")
    a(f"s_and_b32 s{sJ}, s2, 7")
    a(f"s_add_u32 s{sC}, s{sC}, s{sJ}")
    a(f"v_readfirstlane_b32 s{sWave}, v{vT}")
    a(f"s_cmp_eq_u32 s{sWave}, 0")
    a("s_cbranch_scc1 L_helper1")
    if codepf:
        a(f"s_cmp_eq_u32 s{sWave}, 3")
        a("s_cbranch_scc0 L_nocpf")
        a(f"s_getpc_b64 s[{sR0}:{sR0+1}]")
        a("L_pcref:")
        a(f"s_sub_u32 s{sR0}, s{sR0}, L_pcref-{KN}_kernel")
        a(f"s_subb_u32 s{sR0+1}, s{sR0+1}, 0")
        a(f"v_lshlrev_b32 v{vT+3}, 7, v{vLane}")
        for k in range(4):
            a(f"v_add_u32 v{vT+4}, {k*8192}, v{vT+3}")
            a(f"v_min_u32 v{vT+4}, L_end-{KN}_kernel, v{vT+4}")
            a(f"global_load_dword v{vT+5}, v{vT+4}, s[{sR0}:{sR0+1}]")
        a("L_nocpf:")
    a(f"v_and_b32 v{vT+1}, 15, v{vLane}")
    a(f"v_lshrrev_b32 v{vT+2}, 4, v{vLane}")
    a(f"v_lshlrev_b32 v{vKoff}, 9, v{vT+1}")
    a(f"v_lshl_add_u32 v{vKoff}, v{vT+2}, 4, v{vKoff}")
    a(f"v_lshlrev_b32 v{vVoff}, 11, v{vT+2}")
    a(f"v_lshl_add_u32 v{vVoff}, v{vT+1}, 4, v{vVoff}")
    a(f"s_lshl_b32 s{sT}, s{sKap}, 25")
    a(f"s_lshr_b32 s{sT+1}, s2, 6")
    a(f"s_lshl_b32 s{sT+1}, s{sT+1}, 23")
    a(f"s_add_u32 s{sT}, s{sT}, s{sT+1}")
    a(f"s_mul_i32 s{sA1}, s{sJ}, 3")
    a(f"s_add_u32 s{sA1}, s{sA1}, s{sWave}")
    a(f"s_sub_u32 s{sA1}, s{sA1}, 1")
    a(f"s_lshl_b32 s{sA1}, s{sA1}, 13")
    a(f"s_mov_b32 s{sQ}, s{sA1}")
    a("s_waitcnt lgkmcnt(0)")
    a(f"s_load_dword s{sE}, s[{sWs}:{sWs+1}], {WS_EPOCH}")
    srd(sK, sKp, off_s=sT, size=LIMIT)
    srd(sV, sVp, off_s=sT, size=LIMIT)
    if a0mode != "none":
        a("s_barrier")

    koff = lambda j: j * 64
    voff = lambda j: (j >> 1) * 512 + (j & 1) * 256

    def sreg(slot, j):
        if 'vslots' in exp:
            r = 96 + slot * 32 + j * 4
            return f"v[{r}:{r+3}]"
        if slot < 8:
            r = slot * 32 + j * 4
            return f"a[{r}:{r+3}]"
        r = 96 + (slot - 8) * 32 + j * 4
        return f"v[{r}:{r+3}]"

    def issue_group(n_is_k, slot, soff):
        for j in range(8):
            if n_is_k:
                a(f"buffer_load_dwordx4 {sreg(slot,j)}, v{vKoff}, s[{sK}:{sK+3}], s{soff} offen offset:{koff(j)} {kflags}")
            else:
                a(f"buffer_load_dwordx4 {sreg(slot,j)}, v{vVoff}, s[{sV}:{sV+3}], s{soff} offen offset:{voff(j)} {vflags}")

    for n in range(G0):
        if n % 2 == 0 and n > 0:
            a(f"s_add_u32 s{sQ}, s{sQ}, {24*8192}")
        issue_group(n % 2 == 0, n, sQ)
        if pfi is not None and n >= pfi and n < G0 - 1:
            a(f"s_waitcnt vmcnt({8*pfi})")
    stamp(1)
    a(f"v_and_b32 v{vT+6}, 1, v{vLane}")
    a(f"v_cmp_eq_u32 vcc, 1, v{vT+6}")
    a(f"v_mov_b32 v{vT+4}, 0xffff")
    a(f"v_mov_b32 v{vT+5}, 0xffff0000")
    a(f"v_cndmask_b32 v{vT+4}, v{vT+4}, v{vT+5}, vcc")
    a(f"v_bfe_u32 v{vT+6}, v{vLane}, 1, 2")
    for j in range(4):
        a(f"v_cmp_eq_u32 vcc, {j}, v{vT+6}")
        a("s_nop 1")
        a(f"v_cndmask_b32 v{vMask+j}, 0, v{vT+4}, vcc")
    a(f"v_mov_b32 v{vM}, {hex(f2u(-1e30))}")
    a(f"v_mov_b32 v{vL}, 0")
    for i in range(8):
        a(f"v_mov_b32 v{vO+i}, 0")
    smask = sum(1 << w for w in streamers)
    a(f"s_lshr_b32 s{sT}, {smask}, s{sWave}")
    a(f"s_and_b32 s{sPM}, s{sT}, 1")
    a(f"s_mov_b32 s{sPM+1}, 0")
    a(f"s_lshl_b32 s{sT}, 1, s{sWave}")
    a(f"s_sub_u32 s{sT}, s{sT}, 1")
    a(f"s_and_b32 s{sT}, s{sT}, {smask}")
    a(f"s_bcnt1_i32_b32 s{sT}, s{sT}")
    a(f"s_mul_i32 s{sA2}, s{sJ}, {NS}")
    a(f"s_add_u32 s{sA2}, s{sA2}, s{sT}")
    a(f"s_add_u32 s{sA2}, s{sA2}, {24*ntile0}")
    a(f"s_lshl_b32 s{sA2}, s{sA2}, 13")
    a(f"s_cmp_eq_u32 s{sPM}, 1")
    a(f"s_cselect_b32 s{sA2}, s{sA2}, {LIMIT}")
    a(f"v_mov_b32 v{vHd}, {L_HEAD}")
    a(f"v_mov_b32 v{vOne}, 1")
    a(f"s_mov_b32 s{sC1}, {hex(f2u(SC))}")
    a("s_waitcnt lgkmcnt(0)")
    a(f"s_mul_i32 s{sTag}, s{sE}, 0x9E3779B1")
    a(f"s_add_u32 s{sTag}, s{sTag}, 0x7F4A7C15")
    a("s_branch L_barB")

    a("L_helper1:")
    if prio:
        a("s_setprio 3")
    t = vT
    a(f"s_lshr_b32 s{sT+5}, s2, 3")
    a(f"s_lshl_b32 s{sT+5}, s{sT+5}, 2")
    a(f"s_add_u32 s{sT+5}, s{sT+5}, s{sJ}")
    a(f"s_lshr_b32 s{sT}, s{sT+5}, 1")
    a(f"s_lshl_b32 s{sT}, s{sT}, 7")
    a(f"s_lshl_b32 s{sT+3}, s{sT+5}, 9")
    a(f"s_add_u32 s{sT+3}, s{sT+3}, {WS_QG}")
    a(f"s_and_b32 s{sT+4}, s{sT+5}, 1")
    a(f"s_mov_b32 s{sT+1}, 8192")
    a(f"s_sub_u32 s{sT+2}, {448*8192}, s{sT}")
    a(f"s_cmp_lt_u32 s{sJ}, {0 if 'nounit' in exp else 4}")
    a(f"s_cselect_b32 s{sT+2}, s{sT+2}, 0")
    a(f"v_lshrrev_b32 v{t}, 3, v{vLane}")
    a(f"v_mul_lo_u32 v{t}, v{t}, s{sT+1}")
    a(f"v_and_b32 v{t+1}, 7, v{vLane}")
    a(f"v_lshl_add_u32 v{t}, v{t+1}, 4, v{t}")
    a(f"v_lshlrev_b32 v{t+2}, 1, v{vLane}")
    a(f"s_mul_i32 s{sQ}, s{sT+4}, 224")
    a(f"s_mul_i32 s{sQ}, s{sQ}, s{sT+1}")
    a(f"s_lshl_b32 s{sQ+1}, s{sT+1}, 3")
    a("s_waitcnt lgkmcnt(0)")
    a(f"s_load_dword s{sE}, s[{sWs}:{sWs+1}], {WS_EPOCH}")
    srd(sR1, sWq, off_s=sT, size_s=sT + 2)
    srd(sR0, sX, size=896)
    for k in range(7):
        a(f"buffer_load_ushort v{vX+k}, v{t+2}, s[{sR0}:{sR0+3}], 0 offen offset:{128*k}")
    for i in range(28):
        a(f"buffer_load_dwordx4 v[{vW+4*i}:{vW+4*i+3}], v{t}, s[{sR1}:{sR1+3}], s{sQ} offen {wflags}")
        if i < 27:
            a(f"s_add_u32 s{sQ}, s{sQ}, s{sQ+1}")
    if a0mode == "issue":
        a("s_barrier")
    stamp(1)
    a("s_waitcnt lgkmcnt(0)")
    a(f"s_mul_i32 s{sTag}, s{sE}, 0x9E3779B1")
    a(f"s_add_u32 s{sTag}, s{sTag}, 0x7F4A7C15")
    a(f"s_lshr_b32 s{sE}, s2, 3")
    a(f"s_cmp_lt_u32 s{sE}, {28 if NPM < NPRE else 0}")
    a(f"s_cselect_b32 s{sQ+2}, 7, 8")
    a(f"s_mov_b32 s{sQ+4}, {CT0}")
    a(f"s_cselect_b32 s{sQ+4}, {CT0M}, s{sQ+4}")
    a(f"s_cselect_b32 s{sQ+5}, 1, 0")
    a(f"s_cmp_gt_u32 s{sJ}, 4")
    a(f"s_cselect_b32 s{sQ+3}, s{sQ+5}, 0")
    a(f"s_sub_u32 s{sQ+3}, s{sJ}, s{sQ+3}")
    a(f"s_cmp_eq_u32 s{sJ}, 4")
    a(f"s_cselect_b32 s{sQ+5}, s{sQ+5}, 0")
    a(f"s_cmp_eq_u32 s{sQ+5}, 1")
    a(f"s_mov_b32 s{sA1}, {NPRE}")
    a(f"s_cselect_b32 s{sA1}, {NPM}, s{sA1}")
    a(f"s_cmp_eq_u32 s{sJ}, 0")
    a("s_cbranch_scc0 L_noctinit")
    a(f"s_lshr_b32 s{sE}, s2, 3")
    a(f"s_lshl_b32 s{sE}, s{sE}, 8")
    a(f"s_add_u32 s{sE}, s{sE}, {WS_CT}")
    srd(sCT, sWs, off_s=sE, size=8)
    a(f"v_mov_b32 v{vA}, s{sQ+4}")
    a(f"v_mov_b32 v{vA+1}, s{sTag}")
    a(f"v_mov_b32 v{vZ}, 0")
    a("s_mov_b64 exec, 1")
    a(f"buffer_store_dwordx2 v[{vA}:{vA+1}], v{vZ}, s[{sCT}:{sCT+3}], 0 offen sc1")
    a("s_mov_b64 exec, -1")
    a("s_waitcnt vmcnt(29)")
    a("s_branch L_ctdone")
    a("L_noctinit:")
    a("s_waitcnt vmcnt(28)")
    a("L_ctdone:")
    a(f"v_lshlrev_b32 v{t+3}, 4, v{vLane}")
    a(f"v_mov_b32 v{vP}, -1")
    a(f"v_mov_b32 v{vP+1}, -1")
    a(f"v_mov_b32 v{vP+2}, -1")
    a(f"v_mov_b32 v{vP+3}, -1")
    for i in range(4):
        a(f"ds_write_b128 v{t+3}, v[{vP}:{vP+3}] offset:{L_QUE + 1024*i}")
    a(f"v_lshlrev_b32 v{t+3}, 2, v{vLane}")
    a(f"ds_write_b32 v{t+3}, v{vP} offset:{L_QUE + 4096}")
    a(f"ds_write_b32 v{t+3}, v{vP} offset:{L_QUE + 4096 + 256}")
    a(f"s_add_u32 s{sE}, s{sJ}, {S0}")
    a(f"s_add_u32 s{sQ+3}, s{sQ+3}, {S0 + 8*NPM}")
    for blk in range((NPRE + 63) // 64):
        a(f"v_add_u32 v{vP+4}, {blk*64}, v{vLane}")
        a(f"v_lshlrev_b32 v{t+4}, 3, v{vP+4}")
        a(f"v_add_u32 v{t+4}, s{sE}, v{t+4}")
        a(f"v_subrev_u32 v{vP+5}, {NPM}, v{vP+4}")
        a(f"v_mul_lo_u32 v{vP+5}, v{vP+5}, s{sQ+2}")
        a(f"v_add_u32 v{vP+5}, s{sQ+3}, v{vP+5}")
        a(f"v_cmp_gt_u32 vcc, {NPM}, v{vP+4}")
        a("s_nop 1")
        a(f"v_cndmask_b32 v{t+4}, v{vP+5}, v{t+4}, vcc")
        a(f"v_cmp_gt_u32 vcc, s{sA1}, v{vP+4}")
        a("s_nop 1")
        a(f"v_cndmask_b32 v{t+4}, v{vP}, v{t+4}, vcc")
        a(f"ds_write_b32 v{t+3}, v{t+4} offset:{L_QUE + 256*blk}")
    a(f"v_mov_b32 v{t+4}, 0")
    a(f"v_mov_b32 v{t+3}, {L_HEAD}")
    a(f"ds_write_b32 v{t+3}, v{t+4}")
    if 'noq' in exp:
        a(f"v_mov_b32 v{vM}, {hex(f2u(-1e30))}")
        a(f"v_mov_b32 v{vL}, 0")
        for i in range(8):
            a(f"v_mov_b32 v{vO+i}, 0")
        a("s_waitcnt vmcnt(0) lgkmcnt(0)")
        a("s_setprio 0")
        a("s_branch L_barB")
    for k in range(7):
        a(f"v_lshlrev_b32 v{vX+k}, 16, v{vX+k}")
    u = vQ
    a(f"v_add_f32 v{u}, v{vX}, v{vX+1}")
    for k in range(2, 7):
        a(f"v_add_f32 v{u}, v{u}, v{vX+k}")
    row16_reduce([u])
    a("s_nop 1")
    xrow_reduce(u, u + 1, "v_add_f32")
    a(f"v_mul_f32 v{u}, {hex(f2u(1.0/448))}, v{u}")
    a(f"v_sub_f32 v{u+2}, v{vX}, v{u}")
    a(f"v_mul_f32 v{u+3}, v{u+2}, v{u+2}")
    for k in range(1, 7):
        a(f"v_sub_f32 v{u+2}, v{vX+k}, v{u}")
        a(f"v_fmac_f32 v{u+3}, v{u+2}, v{u+2}")
    row16_reduce([u + 3])
    a("s_nop 1")
    xrow_reduce(u + 3, u + 1, "v_add_f32")
    a(f"v_mul_f32 v{u+3}, {hex(f2u(1.0/448))}, v{u+3}")
    bf16_round(u + 3, u + 3)
    a(f"v_add_f32 v{u+3}, {hex(f2u(1e-5))}, v{u+3}")
    bf16_round(u + 3, u + 3)
    a(f"v_sqrt_f32 v{u+3}, v{u+3}")
    a("s_nop 0")
    bf16_round(u + 3, u + 3)
    bf16_round(u, u)
    a(f"v_rcp_f32 v{u+4}, v{u+3}")
    a("s_nop 0")
    for k in range(7):
        d = vX + k
        a(f"v_sub_f32 v{d}, v{d}, v{u}")
        bf16_round(d, d)
        a(f"v_mul_f32 v{u+5}, v{d}, v{u+4}")
        a(f"v_fma_f32 v{d}, -v{u+5}, v{u+3}, v{d}")
        a(f"v_fma_f32 v{d}, v{d}, v{u+4}, v{u+5}")
        bf16_round(d, d)
    a(f"v_lshlrev_b32 v{t+3}, 2, v{vLane}")
    for k in range(7):
        a(f"ds_write_b32 v{t+3}, v{vX+k} offset:{L_XN + 256*k}")
    a(f"v_lshrrev_b32 v{t+3}, 3, v{vLane}")
    a(f"v_lshlrev_b32 v{t+3}, 2, v{t+3}")
    a(f"s_mul_i32 s{sQ}, s{sT+4}, 896")
    a(f"v_add_u32 v{t+3}, s{sQ}, v{t+3}")
    a("s_waitcnt lgkmcnt(0)")
    xr = vQ + 4
    for i in range(28):
        a(f"ds_read_b32 v{xr+i}, v{t+3} offset:{L_XN + 32*i}")
    acc = vP
    for i in range(8):
        a(f"v_mov_b32 v{acc+i}, 0")
    a("s_waitcnt lgkmcnt(0)")
    for i in range(28):
        a(f"s_waitcnt vmcnt({27-i})")
        a(f"v_lshrrev_b32 v{t+4}, 16, v{xr+i}")
        for d in range(4):
            w = vW + 4 * i + d
            a(f"v_dot2_f32_bf16 v{acc+2*d}, v{w}, v{t+4}, v{acc+2*d}")
            a(f"v_dot2_f32_bf16 v{acc+2*d+1}, v{w}, v{xr+i}, v{acc+2*d+1}")
    if a0mode == "landed":
        a("s_barrier")
    rem = transposed_reduce([acc + i for i in range(8)])
    a("s_nop 1")
    for r in rem:
        a(f"v_add_f32_dpp v{r}, v{r}, v{r} row_ror:8 row_mask:0xf bank_mask:0xf")
    a(f"v_mov_b32 v{acc+4}, v{rem[0]}")
    a(f"v_mov_b32 v{acc+5}, s{sTag}")
    a(f"v_mov_b32 v{acc+6}, v{rem[1]}")
    a(f"v_mov_b32 v{acc+7}, s{sTag}")
    a(f"v_and_b32 v{t+3}, 7, v{vLane}")
    a(f"v_lshlrev_b32 v{t+3}, 6, v{t+3}")
    a(f"v_lshrrev_b32 v{t+4}, 4, v{vLane}")
    a(f"v_lshl_add_u32 v{t+3}, v{t+4}, 4, v{t+3}")
    a(f"s_cmp_lt_u32 s{sJ}, 4")
    a("s_cbranch_scc0 L_nopub")
    srd(sR0, sWs, off_s=sT + 3, size=512)
    a(f"s_mov_b32 s{sSave}, 0x00ff00ff")
    a(f"s_mov_b32 s{sSave+1}, 0x00ff00ff")
    a(f"s_mov_b64 exec, s[{sSave}:{sSave+1}]")
    a(f"buffer_store_dwordx4 v[{acc+4}:{acc+7}], v{t+3}, s[{sR0}:{sR0+3}], 0 offen sc1")
    a("s_mov_b64 exec, -1")
    a("L_nopub:")
    stamp(2)
    a(f"s_lshl_b32 s{sT}, s{sKap}, 13")
    a(f"s_add_u32 s{sT}, s{sT}, {WS_QG}")
    srd(sR0, sWs, off_s=sT, size=8192)
    a(f"v_lshlrev_b32 v{t}, 4, v{vLane}")
    a(f"s_mov_b32 s{sT+1}, 4096")
    qg = vW

    def qload(b):
        so = "0" if b < 4 else f"s{sT+1}"
        a(f"buffer_load_dwordx4 v[{qg+4*b}:{qg+4*b+3}], v{t}, s[{sR0}:{sR0+3}], {so} offen offset:{(b%4)*1024} sc1")
    if qmask:
        poll_masked(8, qload, lambda b: [qg + 4 * b + 1, qg + 4 * b + 3], t + 2, "L_pq", sleep_q)
    else:
        poll(lambda: [qload(b) for b in range(8)], [qg + 4 * b + k for b in range(8) for k in (1, 3)], t + 2, "L_pq", sleep_q)
    for b in range(8):
        a(f"v_permlane32_swap_b32 v{qg+4*b}, v{qg+4*b+2}")
    a("s_nop 1")
    for b in range(8):
        a(f"v_add_f32 v{qg+4*b}, v{qg+4*b}, v{qg+4*b+2}")
    for b in range(8):
        a(f"v_cvt_pk_bf16_f32 v{qg+4*b}, v{qg+4*b}, v{qg+4*b}")
    a(f"v_and_b32 v{t}, 31, v{vLane}")
    a(f"v_lshlrev_b32 v{t}, 2, v{t}")
    a(f"v_lshrrev_b32 v{t+1}, 5, v{vLane}")
    a(f"v_lshl_add_u32 v{t}, v{t+1}, 1, v{t}")
    for b in range(8):
        a(f"ds_write_b16 v{t}, v{qg+4*b} offset:{L_Q + 128*b}")
    a(f"v_mov_b32 v{vM}, {hex(f2u(-1e30))}")
    a(f"v_mov_b32 v{vL}, 0")
    for i in range(8):
        a(f"v_mov_b32 v{vO+i}, 0")
    a("s_waitcnt lgkmcnt(0)")
    if prio:
        a("s_setprio 0")
    a("L_barB:")
    a("s_barrier")
    stamp(3)
    a(f"s_lshr_b32 s{sCB}, s2, 3")
    a(f"s_cmp_eq_u32 s{sJ}, 5")
    a(f"s_cselect_b32 s{sCB}, s{sCB}, 255")
    a(f"s_cmp_eq_u32 s{sWave}, 0")
    a("s_cbranch_scc1 L_helper2")
    t = vT
    a(f"v_bfe_u32 v{t}, v{vLane}, 3, 1")
    a(f"v_lshlrev_b32 v{t}, 9, v{t}")
    a(f"v_lshrrev_b32 v{t+1}, 4, v{vLane}")
    a(f"v_lshl_add_u32 v{t}, v{t+1}, 4, v{t}")
    for j in range(8):
        a(f"ds_read_b128 v[{vQ+4*j}:{vQ+4*j+3}], v{t} offset:{L_Q + 64*j}")
    a("s_waitcnt lgkmcnt(0)")

    def qk(slot):
        for j in range(8):
            c = "0" if j == 0 else f"v[{vS}:{vS+3}]"
            a(f"v_mfma_f32_16x16x32_bf16 v[{vS}:{vS+3}], {sreg(slot,j)}, v[{vQ+4*j}:{vQ+4*j+3}], {c}")

    def softmax():
        t = vT
        if 'nosm' in exp:
            return
        a(f"v_cvt_pk_bf16_f32 v{t}, v{vS}, v{vS+1}")
        a(f"v_cvt_pk_bf16_f32 v{t+1}, v{vS+2}, v{vS+3}")
        a(f"v_lshlrev_b32 v{vS}, 16, v{t}")
        a(f"v_and_b32 v{vS+1}, 0xffff0000, v{t}")
        a(f"v_lshlrev_b32 v{vS+2}, 16, v{t+1}")
        a(f"v_and_b32 v{vS+3}, 0xffff0000, v{t+1}")
        a(f"v_max3_f32 v{t}, v{vS}, v{vS+1}, v{vS+2}")
        a(f"v_max_f32 v{t}, v{t}, v{vS+3}")
        xrow_reduce(t, t + 1, "v_max_f32")
        a(f"v_mul_f32 v{t}, s{sC1}, v{t}")
        a(f"v_max_f32 v{t}, v{t}, v{vM}")
        a(f"v_sub_f32 v{t+1}, v{vM}, v{t}")
        a(f"v_exp_f32 v{t+1}, v{t+1}")
        a(f"v_mov_b32 v{vM}, v{t}")
        for i in range(4):
            a(f"v_fma_f32 v{vS+i}, v{vS+i}, s{sC1}, -v{t}")
        for i in range(4):
            a(f"v_exp_f32 v{vS+i}, v{vS+i}")
        for i in range(8):
            a(f"v_mul_f32 v{vO+i}, v{vO+i}, v{t+1}")
        a(f"v_add_f32 v{t+2}, v{vS}, v{vS+1}")
        a(f"v_add_f32 v{t+3}, v{vS+2}, v{vS+3}")
        a(f"v_add_f32 v{t+2}, v{t+2}, v{t+3}")
        a(f"v_fma_f32 v{vL}, v{vL}, v{t+1}, v{t+2}")
        for i in range(4):
            a(f"v_cvt_pk_bf16_f32 v{t+2+i}, v{vS+i}, v{vS+i}")
        for i in range(4):
            for j in range(4):
                a(f"v_and_b32 v{vP+4*i+j}, v{t+2+i}, v{vMask+j}")

    def pv(slot):
        for i in range(4):
            for h in range(2):
                a(f"v_mfma_f32_16x16x32_bf16 v[{vO+4*h}:{vO+4*h+3}], {sreg(slot,i*2+h)}, v[{vP+4*i}:{vP+4*i+3}], v[{vO+4*h}:{vO+4*h+3}]")

    def static_tile(dst, tau):
        if tau < ntile0:
            a(f"s_add_u32 s{dst}, s{sA1}, {24*tau*8192}")
        else:
            a(f"s_add_u32 s{dst}, s{sA2}, {(tau-ntile0)*8*NS*8192}")

    slot_of_group = {n: n for n in range(G0)}
    issued = G0
    free = []
    treg = lambda tau: sQ + (tau % 8)
    got = set()

    def get_tile(tau):
        if tau not in got:
            got.add(tau)
            static_tile(treg(tau), tau)
    nissue = T - (G0 - G)
    issue_steps = set(2 * k + 1 for k in range(nissue))
    for n in range(n0):
        tau = n >> 1
        if n % 2 == 0 and tau >= ntile0:
            a(f"s_cmp_ge_u32 s{treg(tau)}, {LIMIT}")
            a("s_cbranch_scc1 L_loopend")
        a(f"s_waitcnt vmcnt({min(63, (issued-n-1)*8)})")
        if n % 2 == 0:
            qk(slot_of_group[n])
        else:
            a("s_nop 1")
            pv(slot_of_group[n])
        free.append(slot_of_group[n])
        if n in issue_steps:
            get_tile(issued >> 1)
            sl = free.pop(0)
            slot_of_group[issued] = sl
            issue_group(issued % 2 == 0, sl, treg(issued >> 1))
            issued += 1
        if n % 2 == 0:
            a("s_nop 7")
            softmax()
    assert issued == n0 + G
    sOf = sQ
    for i in range(F):
        get_tile(tau0 + i)
    for i in range(F):
        a(f"s_mov_b32 s{sT+i}, s{treg(tau0+i)}")
    for i in range(F):
        a(f"s_mov_b32 s{sOf+i}, s{sT+i}")
    static_tile(sT, tau0 + F)
    a(f"s_lshr_b32 s{sT}, s{sT}, 13")
    a(f"v_mov_b32 v{vE}, s{sT}")
    stamp(4)
    period_tiles = 1 if G == 2 else (G // 2 if G % 2 == 0 else G)
    slot_of = lambda n: slot_of_group[n0 + ((n - n0) % G)]
    W = 8 * G - 1
    empties = []

    def decode(idx):
        a("s_waitcnt lgkmcnt(0)")
        a(f"v_readfirstlane_b32 s{sT}, v{vE}")
        a("s_nop 0")
        a(f"s_cmp_eq_u32 s{sT}, -1")
        a(f"s_cbranch_scc1 L_empty{idx}")
        a(f"L_entryok{idx}:")
        a(f"s_min_u32 s{sT}, s{sT}, {TILES}")
        a(f"s_lshl_b32 s{sOf+F}, s{sT}, 13")
        empties.append(idx)

    def take_ticket():
        a(f"s_mov_b64 exec, s[{sPM}:{sPM+1}]")
        a(f"ds_add_rtn_u32 v{vTk}, v{vHd}, v{vOne}")
        a("s_mov_b64 exec, -1")

    def read_entry():
        a(f"s_mov_b64 exec, s[{sPM}:{sPM+1}]")
        a(f"v_lshlrev_b32 v{vTk}, 2, v{vTk}")
        a(f"ds_read_b32 v{vE}, v{vTk} offset:{L_QUE}")
        a(f"v_mov_b32 v{vAd}, v{vTk}")
        a("s_mov_b64 exec, -1")

    def ld(isk, slot, j, soff):
        if isk:
            a(f"buffer_load_dwordx4 {sreg(slot,j)}, v{vKoff}, s[{sK}:{sK+3}], s{soff} offen offset:{koff(j)} {kflags}")
        else:
            a(f"buffer_load_dwordx4 {sreg(slot,j)}, v{vVoff}, s[{sV}:{sV+3}], s{soff} offen offset:{voff(j)} {vflags}")

    a("L_loop:")
    for tl in range(period_tiles):
        n = n0 + 2 * tl
        a(f"s_cmp_ge_u32 s{sOf}, {LIMIT}")
        a("s_cbranch_scc1 L_loopend")
        if G % 2 == 0:
            decode(tl)
            take_ticket()
        else:
            take_ticket()
        m = n + G
        rel = (m >> 1) - (n >> 1)
        sl = slot_of(n)
        for j in range(8):
            a(f"s_waitcnt vmcnt({W})")
            c = "0" if j == 0 else f"v[{vS}:{vS+3}]"
            a(f"v_mfma_f32_16x16x32_bf16 v[{vS}:{vS+3}], {sreg(sl,j)}, v[{vQ+4*j}:{vQ+4*j+3}], {c}")
            ld(m % 2 == 0, sl, j, sOf + rel)
        a("s_nop 7")
        softmax()
        n += 1
        m = n + G
        rel = (m >> 1) - (n >> 1)
        sl = slot_of(n)
        if G % 2 == 0:
            a("s_waitcnt lgkmcnt(0)")
            read_entry()
        else:
            decode(tl)
            read_entry()
        for j in range(8):
            i, h = j >> 1, j & 1
            a(f"s_waitcnt vmcnt({W})")
            a(f"v_mfma_f32_16x16x32_bf16 v[{vO+4*h}:{vO+4*h+3}], {sreg(sl,j)}, v[{vP+4*i}:{vP+4*i+3}], v[{vO+4*h}:{vO+4*h+3}]")
            ld(m % 2 == 0, sl, j, sOf + rel)
        for i in range(F):
            a(f"s_mov_b32 s{sOf+i}, s{sOf+i+1}")
    a("s_branch L_loop")
    for idx in empties:
        a(f"L_empty{idx}:")
        a(f"s_mov_b32 s{sSpin}, 0")
        a(f"L_emptyl{idx}:")
        a("s_sleep 1")
        a(f"ds_read_b32 v{vE}, v{vAd} offset:{L_QUE}")
        a("s_waitcnt lgkmcnt(0)")
        a(f"v_readfirstlane_b32 s{sT}, v{vE}")
        a("s_nop 0")
        a(f"s_cmp_eq_u32 s{sT}, -1")
        a(f"s_cbranch_scc0 L_entryok{idx}")
        a(f"s_add_u32 s{sSpin}, s{sSpin}, 1")
        a(f"s_cmp_lt_u32 s{sSpin}, {MAXSPIN*16}")
        a(f"s_cbranch_scc1 L_emptyl{idx}")
        a(f"s_mov_b32 s{sT}, {TILES}")
        a(f"s_branch L_entryok{idx}")
    a("L_loopend:")
    a("s_waitcnt vmcnt(0)")
    a("s_branch L_combine")

    a("L_helper2:")
    t = vT
    if 'nomlp' in exp:
        a("s_branch L_feed")
    a(f"s_lshl_b32 s{sT}, s{sKap}, 9")
    a(f"s_lshl_b32 s{sT+1}, s{sC}, 4")
    a(f"s_add_u32 s{sT}, s{sT}, s{sT+1}")
    a(f"s_mul_i32 s{sT}, s{sT}, 896")
    srd(sR0, sWo, off_s=sT, size=16 * 896)
    a(f"v_lshlrev_b32 v{t}, 4, v{vLane}")
    wr = 144
    for r in range(16):
        a(f"s_mov_b32 s{sT+1}, {r*896}")
        a(f"buffer_load_dwordx4 v[{wr+4*r}:{wr+4*r+3}], v{t}, s[{sR0}:{sR0+3}], s{sT+1} offen {wflags}")
    a(f"s_mov_b32 s{sT}, 0x05040100")
    a(f"s_mov_b32 s{sT+1}, 0x07060302")
    a("s_waitcnt vmcnt(0)")
    for pr in range(8):
        r0 = wr + (2 * pr) * 4
        r1 = r0 + 4
        for d in range(4):
            o = vIW + pr * 8 + 2 * d
            a(f"v_perm_b32 v{o}, v{r1+d}, v{r0+d}, s{sT}")
            a(f"v_perm_b32 v{o+1}, v{r1+d}, v{r0+d}, s{sT+1}")
    sM = sQ + 2
    a(f"s_lshr_b32 s{sM}, s2, 3")
    a(f"s_cmp_eq_u32 s{sJ}, 4")
    a(f"s_cselect_b32 s{sM}, s{sM}, 255")
    a(f"s_cmp_lt_u32 s{sM}, {0 if 'nomlp2' in exp else 28}")
    a("s_cbranch_scc0 L_nomlp")
    a(f"s_lshl_b32 s{sT}, s{sM}, 7")
    a(f"s_sub_u32 s{sT+1}, {448*3584}, s{sT}")
    if 'guoob' in exp:
        a(f"s_mov_b32 s{sT+1}, 0")
    srd(sR0, sWg, off_s=sT, size_s=sT + 1)
    srd(sR1, sWu, off_s=sT, size_s=sT + 1)
    a(f"v_lshrrev_b32 v{t}, 3, v{vLane}")
    a(f"v_lshlrev_b32 v{t+1}, 2, v{t}")
    a(f"v_mul_u32_u24 v{t}, 3584, v{t}")
    a(f"v_and_b32 v{t+2}, 7, v{vLane}")
    a(f"v_lshl_add_u32 v{t}, v{t+2}, 4, v{t}")
    acc = vP
    for i in range(16):
        a(f"v_mov_b32 v{acc+i}, 0")
    a(f"s_mov_b32 s{sQ}, 0")
    a(f"s_mov_b32 s{sQ+1}, 0")
    a("L_gu:")
    for k in range(GUK):
        a(f"buffer_load_dwordx4 v[{vW+8*k}:{vW+8*k+3}], v{t}, s[{sR0}:{sR0+3}], s{sQ} offen {wflags}")
        a(f"buffer_load_dwordx4 v[{vW+8*k+4}:{vW+8*k+7}], v{t}, s[{sR1}:{sR1+3}], s{sQ} offen {wflags}")
        a(f"s_add_u32 s{sQ}, s{sQ}, {8*3584}")
    for k in range(GUK):
        a(f"ds_read_b32 v{vQ+k}, v{t+1} offset:{L_XN + 32*k}")
    a(f"v_add_u32 v{t+1}, {32*GUK}, v{t+1}")
    a("s_waitcnt lgkmcnt(0)")
    for k in range(GUK):
        a(f"s_waitcnt vmcnt({2*(GUK-1-k)})")
        a(f"v_lshrrev_b32 v{t+2}, 16, v{vQ+k}")
        for mtx in range(2):
            for d in range(4):
                w = vW + 8 * k + 4 * mtx + d
                a(f"v_dot2_f32_bf16 v{acc+8*mtx+2*d}, v{w}, v{t+2}, v{acc+8*mtx+2*d}")
                a(f"v_dot2_f32_bf16 v{acc+8*mtx+2*d+1}, v{w}, v{vQ+k}, v{acc+8*mtx+2*d+1}")
    a(f"s_add_u32 s{sQ+1}, s{sQ+1}, 1")
    a(f"s_cmp_lt_u32 s{sQ+1}, {1 if 'gu1' in exp else 56//GUK}")
    a("s_cbranch_scc1 L_gu")
    rem = transposed_reduce([acc + i for i in range(16)])
    a("s_nop 1")
    for r in rem:
        a(f"v_add_f32_dpp v{r}, v{r}, v{r} row_ror:8 row_mask:0xf bank_mask:0xf")
    for i in range(4):
        a(f"v_mov_b32 v{acc+4+i}, v{rem[i]}")
    a("s_nop 1")
    for i in range(4):
        a(f"v_permlane32_swap_b32 v{rem[i]}, v{acc+4+i}")
    a("s_nop 1")
    for i in range(4):
        bf16_round(rem[i], rem[i])
        bf16_round(acc + 4 + i, acc + 4 + i)
        a(f"v_max_f32 v{rem[i]}, 0, v{rem[i]}")
        a(f"v_mul_f32 v{rem[i]}, v{rem[i]}, v{acc+4+i}")
        bf16_round(rem[i], rem[i])
    a(f"v_and_b32 v{t}, 7, v{vLane}")
    a(f"v_lshlrev_b32 v{t}, 5, v{t}")
    a(f"v_bfe_u32 v{t+1}, v{vLane}, 4, 1")
    a(f"v_lshl_add_u32 v{t}, v{t+1}, 4, v{t}")
    a(f"s_mov_b32 s{sSave}, -1")
    a(f"s_mov_b32 s{sSave+1}, 0")
    a(f"s_mov_b64 exec, s[{sSave}:{sSave+1}]")
    a(f"ds_write_b128 v{t}, v[{rem[0]}:{rem[3]}] offset:{L_H}")
    a("s_mov_b64 exec, -1")
    a(f"s_mul_i32 s{sT}, s{sM}, {64*896}")
    srd(sR0, sWd, off_s=sT, size=(0 if 'dnoob' in exp else 64 * 896))
    a(f"v_lshlrev_b32 v{t}, 4, v{vLane}")
    a(f"v_mov_b32 v{t+1}, 0")
    for i in range(8):
        a(f"v_mov_b32 v{acc+i}, 0")
    a(f"s_mov_b32 s{sQ}, 0")
    a(f"s_mov_b32 s{sQ+1}, 0")
    a("s_waitcnt lgkmcnt(0)")
    a("L_dn:")
    for r in range(DNR):
        a(f"buffer_load_dwordx4 v[{vW+4*r}:{vW+4*r+3}], v{t}, s[{sR0}:{sR0+3}], s{sQ} offen {wflags}")
        a(f"s_add_u32 s{sQ}, s{sQ}, 896")
    for q4 in range(DNR // 4):
        a(f"ds_read_b128 v[{vQ+4*q4}:{vQ+4*q4+3}], v{t+1} offset:{L_H + 16*q4}")
    a(f"v_add_u32 v{t+1}, {4*DNR}, v{t+1}")
    a("s_waitcnt lgkmcnt(0)")
    for r in range(DNR):
        a(f"s_waitcnt vmcnt({DNR-1-r})")
        a(f"v_lshrrev_b32 v{t+2}, 16, v{vQ+r}")
        for d in range(4):
            w = vW + 4 * r + d
            a(f"v_dot2_f32_bf16 v{acc+2*d}, v{w}, v{t+2}, v{acc+2*d}")
            a(f"v_dot2_f32_bf16 v{acc+2*d+1}, v{w}, v{vQ+r}, v{acc+2*d+1}")
    a(f"s_add_u32 s{sQ+1}, s{sQ+1}, 1")
    a(f"s_cmp_lt_u32 s{sQ+1}, {1 if 'dn1' in exp else 64//DNR}")
    a("s_cbranch_scc1 L_dn")
    if 'nofbp' not in exp:
        publish48(acc, WS_FB, t, 28, sM)
    a("L_nomlp:")
    a(f"s_cmp_lt_u32 s{sCB}, {0 if 'nofbg' in exp else 21}")
    a("s_cbranch_scc0 L_feed")
    a(f"s_lshl_b32 s{sT}, s{sCB}, 7")
    a(f"s_add_u32 s{sT}, s{sT}, {WS_FB}")
    srd(sR0, sWs, off_s=sT, size=28 * 2688)
    a(f"v_lshrrev_b32 v{t}, 3, v{vLane}")
    a(f"v_and_b32 v{t+1}, 7, v{vLane}")
    a(f"v_lshlrev_b32 v{t+1}, 4, v{t+1}")
    fb = 144
    for k in range(4):
        a(f"v_add_u32 v{t+4}, {8*k}, v{t}")
        a(f"v_min_u32 v{t+4}, 27, v{t+4}")
        a(f"v_mul_u32_u24 v{t+4}, 2688, v{t+4}")
        a(f"v_add_u32 v{fb+16+k}, v{t+4}, v{t+1}")

    def fbloads():
        for k in range(4):
            a(f"buffer_load_dwordx4 v[{fb+4*k}:{fb+4*k+3}], v{fb+16+k}, s[{sR0}:{sR0+3}], 0 offen sc1")
    poll(fbloads, [fb + 4 * k + 3 for k in range(4)], t + 2, "L_pfb", sleep_mid)
    acc = vP
    a(f"v_cmp_gt_u32 vcc, 4, v{t}")
    a("s_nop 1")
    for c in range(3):
        a(f"v_cndmask_b32 v{acc+c}, 0, v{fb+12+c}, vcc")
        a(f"v_add_f32 v{acc+c}, v{acc+c}, v{fb+c}")
        a(f"v_add_f32 v{t+2}, v{fb+4+c}, v{fb+8+c}")
        a(f"v_add_f32 v{acc+c}, v{acc+c}, v{t+2}")
    a("s_nop 1")
    for c in range(3):
        a(f"v_add_f32_dpp v{acc+c}, v{acc+c}, v{acc+c} row_ror:8 row_mask:0xf bank_mask:0xf")
    for c in range(3):
        xrow_reduce(acc + c, t + 2, "v_add_f32")
    a(f"v_mov_b32 v{acc+3}, 0")
    a(f"ds_write_b128 v{t+1}, v[{acc}:{acc+3}] offset:{L_B}")
    a("s_waitcnt lgkmcnt(0)")
    a("L_feed:")
    stamp(4)
    if dyn:
        t = vT
        sF, sN = sQ, sQ + 1
        a(f"s_lshr_b32 s{sT}, s2, 3")
        a(f"s_lshl_b32 s{sT}, s{sT}, 8")
        a(f"s_add_u32 s{sT}, s{sT}, {WS_CT}")
        srd(sCT, sWs, off_s=sT, size=8)
        a(f"v_mov_b32 v{vZ}, 0")
        a(f"v_mov_b32 v{t}, {L_HEAD}")
        a(f"s_mov_b32 s{sF}, s{sA1}")
        a(f"s_mov_b32 s{sSpin}, 0")
        a("L_feedloop:")
        a(f"ds_read_b32 v{t+1}, v{t}")
        a("s_waitcnt lgkmcnt(0)")
        a(f"v_readfirstlane_b32 s{sN}, v{t+1}")
        a(f"s_add_u32 s{sN}, s{sN}, {LA}")
        a(f"s_sub_i32 s{sN}, s{sN}, s{sF}")
        a(f"s_cmp_gt_i32 s{sN}, 0")
        a("s_cbranch_scc1 L_feedgo")
        a(f"s_sleep {sleep_feed}")
        a(f"s_add_u32 s{sSpin}, s{sSpin}, 1")
        a(f"s_cmp_lt_u32 s{sSpin}, {MAXSPIN*16}")
        a("s_cbranch_scc1 L_feedloop")
        a("s_branch L_feedend")
        a("L_feedgo:")
        a(f"s_min_u32 s{sN}, s{sN}, 8")
        a("L_feedretry:")
        a("s_mov_b64 exec, 1")
        a(f"v_mov_b32 v{vA}, s{sN}")
        a(f"v_mov_b32 v{vA+1}, 0")
        a(f"buffer_atomic_add_x2 v[{vA}:{vA+1}], v{vZ}, s[{sCT}:{sCT+3}], 0 offen sc0")
        a("s_mov_b64 exec, -1")
        a("s_waitcnt vmcnt(0)")
        a(f"v_readfirstlane_b32 s{sT+1}, v{vA+1}")
        a(f"v_readfirstlane_b32 s{sT}, v{vA}")
        a(f"s_cmp_eq_u32 s{sT+1}, s{sTag}")
        a("s_cbranch_scc1 L_feedok")
        a(f"s_add_u32 s{sSpin}, s{sSpin}, 1")
        a(f"s_cmp_lt_u32 s{sSpin}, {MAXSPIN*16}")
        a("s_cbranch_scc1 L_feedretry")
        a(f"s_mov_b32 s{sT}, {TILES}")
        a("L_feedok:")
        a(f"s_add_u32 s{sT+2}, s{sT}, s{sN}")
        a(f"s_cmp_ge_u32 s{sT+2}, {TILES}")
        a(f"s_cselect_b32 s{sN}, 32, s{sN}")
        a(f"v_add_u32 v{t+2}, s{sT}, v{vLane}")
        a(f"v_add_u32 v{t+3}, s{sF}, v{vLane}")
        a(f"v_lshlrev_b32 v{t+3}, 2, v{t+3}")
        a(f"s_lshl_b64 s[{sSave}:{sSave+1}], 1, s{sN}")
        a(f"s_sub_u32 s{sSave}, s{sSave}, 1")
        a(f"s_subb_u32 s{sSave+1}, s{sSave+1}, 0")
        a(f"s_mov_b64 exec, s[{sSave}:{sSave+1}]")
        a(f"ds_write_b32 v{t+3}, v{t+2} offset:{L_QUE}")
        a("s_mov_b64 exec, -1")
        a(f"s_add_u32 s{sF}, s{sF}, s{sN}")
        a(f"s_cmp_lt_u32 s{sT+2}, {TILES}")
        a("s_cbranch_scc1 L_feedloop")
        a("L_feedend:")
        a("s_waitcnt lgkmcnt(0)")

    a("L_combine:")
    stamp(5)
    t = vT
    xrow_reduce(vL, t, "v_add_f32")
    a(f"v_bfe_u32 v{t}, v{vLane}, 3, 1")
    a(f"v_lshlrev_b32 v{t+1}, 3, v{t}")
    a(f"s_lshl_b32 s{sT}, s{sWave}, 4")
    a(f"v_add_u32 v{t+1}, s{sT}, v{t+1}")
    a(f"ds_write_b64 v{t+1}, v[{vM}:{vM+1}] offset:{L_ST}")
    a(f"v_lshlrev_b32 v{t+3}, 10, v{t}")
    a(f"v_lshrrev_b32 v{t+4}, 4, v{vLane}")
    a(f"v_lshl_add_u32 v{t+3}, v{t+4}, 7, v{t+3}")
    a(f"v_and_b32 v{t+4}, 7, v{vLane}")
    a(f"v_lshl_add_u32 v{t+3}, v{t+4}, 2, v{t+3}")
    a(f"s_lshl_b32 s{sT}, s{sWave}, 11")
    a(f"v_add_u32 v{t+3}, s{sT}, v{t+3}")
    for h in range(2):
        for ii in range(4):
            a(f"ds_write_b32 v{t+3}, v{vO+4*h+ii} offset:{L_RED + h*512 + ii*32}")
    a(f"s_lshl_b32 s{sT}, s{sKap}, 5")
    a(f"s_add_u32 s{sT}, s{sT}, s{sC}")
    a(f"s_lshl_b32 s{sT}, s{sT}, 13")
    a(f"s_add_u32 s{sT}, s{sT}, {WS_PG}")
    srd(sR0, sWs, off_s=sT, size=8192)
    a(f"s_mov_b32 s{sT+1}, 4096")
    a("s_waitcnt lgkmcnt(0)")
    a("s_barrier")
    st = vP
    a(f"v_mov_b32 v{t+1}, 0")
    for w in range(1, 4):
        a(f"ds_read_b128 v[{st+4*w}:{st+4*w+3}], v{t+1} offset:{L_ST+16*w}")
    a(f"v_lshlrev_b32 v{t}, 2, v0")
    ov = vQ + 8
    for h in range(2):
        for w in range(1, 4):
            a(f"ds_read_b32 v{ov+3*h+w-1}, v{t} offset:{L_RED + w*2048 + h*1024}")
    a(f"v_lshlrev_b32 v{t}, 4, v0")
    a("s_waitcnt lgkmcnt(6)")
    g = vO
    for h in range(2):
        M = g + 4 * h + 1
        Lr = g + 4 * h + 2
        a(f"v_max3_f32 v{M}, v{st+4+2*h}, v{st+8+2*h}, v{st+12+2*h}")
        for w in range(1, 4):
            a(f"v_sub_f32 v{vQ+3*h+w-1}, v{st+4*w+2*h}, v{M}")
        for w in range(1, 4):
            a(f"v_exp_f32 v{vQ+3*h+w-1}, v{vQ+3*h+w-1}")
        a("s_nop 0")
        a(f"v_mul_f32 v{Lr}, v{vQ+3*h}, v{st+4+2*h+1}")
        for w in range(2, 4):
            a(f"v_fmac_f32 v{Lr}, v{vQ+3*h+w-1}, v{st+4*w+2*h+1}")
        a(f"v_mov_b32 v{g+4*h+3}, s{sTag}")
    a("s_waitcnt lgkmcnt(0)")
    for h in range(2):
        a(f"v_mul_f32 v{g+4*h}, v{vQ+3*h}, v{ov+3*h}")
        for w in range(2, 4):
            a(f"v_fmac_f32 v{g+4*h}, v{vQ+3*h+w-1}, v{ov+3*h+w-1}")
    a(f"buffer_store_dwordx4 v[{g}:{g+3}], v{t}, s[{sR0}:{sR0+3}], 0 offen sc1")
    a(f"buffer_store_dwordx4 v[{g+4}:{g+7}], v{t}, s[{sR0}:{sR0+3}], s{sT+1} offen sc1")
    stamp(6)
    if 'notail' in exp:
        a("s_branch L_fin")
    a(f"s_cmp_eq_u32 s{sWave}, 0")
    a("s_cbranch_scc0 L_s1done")
    a(f"s_lshl_b32 s{sT}, s{sKap}, 18")
    a(f"s_lshl_b32 s{sT+1}, s{sC}, 8")
    a(f"s_add_u32 s{sT}, s{sT}, s{sT+1}")
    a(f"s_add_u32 s{sT}, s{sT}, {WS_PG}")
    srd(sR0, sWs, off_s=sT, size=32 * 8192)
    a(f"v_lshrrev_b32 v{t}, 4, v{vLane}")
    a(f"v_lshlrev_b32 v{t}, 13, v{t}")
    a(f"v_and_b32 v{t+1}, 15, v{vLane}")
    a(f"v_lshl_add_u32 v{t}, v{t+1}, 4, v{t}")
    pg = 160

    for k in range(8):
        a(f"v_add_u32 v{pg+32+k}, {k*32768}, v{t}")

    def pload(k):
        a(f"buffer_load_dwordx4 v[{pg+4*k}:{pg+4*k+3}], v{pg+32+k}, s[{sR0}:{sR0+3}], 0 offen sc1")
    poll_masked(8, pload, lambda k: [pg + 4 * k + 3], t + 2, "L_pp", sleep_tail)
    stamp(7)
    a(f"v_max3_f32 v{t+1}, v{pg+1}, v{pg+5}, v{pg+9}")
    a(f"v_max3_f32 v{t+1}, v{t+1}, v{pg+13}, v{pg+17}")
    a(f"v_max3_f32 v{t+1}, v{t+1}, v{pg+21}, v{pg+25}")
    a(f"v_max_f32 v{t+1}, v{t+1}, v{pg+29}")
    xrow_reduce(t + 1, t + 2, "v_max_f32")
    for k in range(8):
        a(f"v_sub_f32 v{pg+4*k+1}, v{pg+4*k+1}, v{t+1}")
    for k in range(8):
        a(f"v_exp_f32 v{pg+4*k+1}, v{pg+4*k+1}")
    a("s_nop 0")
    a(f"v_mul_f32 v{t+3}, v{pg+1}, v{pg}")
    a(f"v_mul_f32 v{t+4}, v{pg+1}, v{pg+2}")
    for k in range(1, 8):
        a(f"v_fmac_f32 v{t+3}, v{pg+4*k+1}, v{pg+4*k}")
        a(f"v_fmac_f32 v{t+4}, v{pg+4*k+1}, v{pg+4*k+2}")
    xrow_reduce(t + 3, t + 2, "v_add_f32")
    xrow_reduce(t + 4, t + 2, "v_add_f32")
    a(f"v_rcp_f32 v{t+5}, v{t+4}")
    a("s_nop 0")
    a(f"v_mul_f32 v{t+6}, v{t+3}, v{t+5}")
    a(f"v_fma_f32 v{t+3}, -v{t+6}, v{t+4}, v{t+3}")
    a(f"v_fma_f32 v{t+3}, v{t+3}, v{t+5}, v{t+6}")
    a("s_nop 1")
    a(f"v_mov_b32_dpp v{t+4}, v{t+3} row_shl:1 row_mask:0xf bank_mask:0xf")
    a("s_nop 0")
    a(f"v_cvt_pk_bf16_f32 v{t+3}, v{t+3}, v{t+4}")
    a("s_nop 0")
    for i in range(8):
        a(f"v_readlane_b32 s{sQ+i}, v{t+3}, {2*i}")
    a("s_nop 1")
    acc = vP
    for pr in range(8):
        for c in range(8):
            c0 = "0" if pr == 0 else f"v{acc+c}"
            a(f"v_dot2_f32_bf16 v{acc+c}, v{vIW+pr*8+c}, s{sQ+pr}, {c0}")
    publish48(acc, WS_FA, t, 256, 2)
    a("L_s1done:")
    stamp(8)
    t = vT
    a(f"s_cmp_lt_u32 s{sCB}, 21")
    a("s_cbranch_scc0 L_fin")
    a("s_barrier")
    a(f"s_lshl_b32 s{sT}, s{sCB}, 7")
    a(f"s_add_u32 s{sT}, s{sT}, {WS_FA}")
    srd(sR0, sWs, off_s=sT, size=256 * 2688)
    a(f"v_lshrrev_b32 v{t}, 3, v0")
    a(f"v_and_b32 v{t+1}, 7, v{t}")
    a(f"v_lshrrev_b32 v{t}, 3, v{t}")
    a(f"v_lshl_add_u32 v{t}, v{t}, 6, v{t+1}")
    a(f"v_mul_u32_u24 v{t}, 2688, v{t}")
    a(f"v_and_b32 v{t+1}, 7, v{vLane}")
    a(f"v_lshlrev_b32 v{t+1}, 4, v{t+1}")
    a(f"v_add_u32 v{t}, v{t}, v{t+1}")
    fa = vQ

    for k in range(8):
        a(f"v_add_u32 v{vW+k}, {k*8*2688}, v{t}")

    def faload(k):
        a(f"buffer_load_dwordx4 v[{fa+4*k}:{fa+4*k+3}], v{vW+k}, s[{sR0}:{sR0+3}], 0 offen sc1")
    a(f"s_mul_i32 s{sT+3}, s{sCB}, 37")
    a(f"s_lshr_b32 s{sT+3}, s{sT+3}, 8")
    a(f"s_mul_i32 s{sT+4}, s{sT+3}, 7")
    a(f"s_sub_u32 s{sT+4}, s{sCB}, s{sT+4}")
    a(f"s_lshl_b32 s{sT+4}, s{sT+4}, 6")
    a(f"s_mul_i32 s{sT+5}, s{sT+3}, 3")
    a(f"s_add_u32 s{sT+4}, s{sT+4}, s{sT+5}")
    a(f"v_and_b32 v{t+4}, 7, v{vLane}")
    a(f"v_lshlrev_b32 v{t+4}, 3, v{t+4}")
    a(f"v_lshrrev_b32 v{t+5}, 3, v{vLane}")
    a(f"v_add_u32 v{t+4}, v{t+4}, v{t+5}")
    a(f"v_add_u32 v{t+4}, s{sT+4}, v{t+4}")
    a(f"v_lshlrev_b32 v{t+4}, 1, v{t+4}")
    a(f"v_add_u32 v{t+6}, s{sT+5}, v{t+5}")
    a(f"v_cmp_gt_u32 vcc, 8, v{t+6}")
    a(f"v_cmp_gt_u32 s[{sSave}:{sSave+1}], 3, v{t+5}")
    a("s_nop 1")
    a(f"s_and_b64 s[{sSave}:{sSave+1}], s[{sSave}:{sSave+1}], vcc")
    srd(sR1, sX, size=896)
    a(f"buffer_load_ushort v{vP+8}, v{t+4}, s[{sR1}:{sR1+3}], 0 offen")
    poll_masked(8, faload, lambda k: [fa + 4 * k + 3], t + 2, "L_pfa", sleep_tail)
    stamp(9)
    acc = vP
    for c in range(3):
        a(f"v_add_f32 v{acc+c}, v{fa+c}, v{fa+4+c}")
        a(f"v_add_f32 v{t+2}, v{fa+8+c}, v{fa+12+c}")
        a(f"v_add_f32 v{acc+c}, v{acc+c}, v{t+2}")
        a(f"v_add_f32 v{t+2}, v{fa+16+c}, v{fa+20+c}")
        a(f"v_add_f32 v{t+3}, v{fa+24+c}, v{fa+28+c}")
        a(f"v_add_f32 v{t+2}, v{t+2}, v{t+3}")
        a(f"v_add_f32 v{acc+c}, v{acc+c}, v{t+2}")
    a("s_nop 1")
    for c in range(3):
        a(f"v_add_f32_dpp v{acc+c}, v{acc+c}, v{acc+c} row_ror:8 row_mask:0xf bank_mask:0xf")
    for c in range(3):
        xrow_reduce(acc + c, t + 2, "v_add_f32")
    a(f"v_mov_b32 v{acc+3}, 0")
    a(f"s_lshl_b32 s{sT}, s{sWave}, 7")
    a(f"v_add_u32 v{t+2}, s{sT}, v{t+1}")
    a(f"ds_write_b128 v{t+2}, v[{acc}:{acc+3}] offset:{L_FIN}")
    srd(sR1, sOut, size=896)
    a("s_waitcnt lgkmcnt(0)")
    a("s_barrier")
    a(f"s_cmp_eq_u32 s{sWave}, 0")
    a("s_cbranch_scc0 L_fin")
    a(f"v_min_u32 v{t+5}, 3, v{t+5}")
    a(f"v_lshl_add_u32 v{t+1}, v{t+5}, 2, v{t+1}")
    for w in range(4):
        a(f"ds_read_b32 v{acc+w}, v{t+1} offset:{L_FIN+128*w}")
    a(f"ds_read_b32 v{acc+4}, v{t+1} offset:{L_B}")
    a("s_waitcnt vmcnt(0) lgkmcnt(0)")
    a(f"v_add_f32 v{acc}, v{acc}, v{acc+1}")
    a(f"v_add_f32 v{acc+2}, v{acc+2}, v{acc+3}")
    a(f"v_add_f32 v{acc}, v{acc}, v{acc+2}")
    bf16_round(acc, acc)
    bf16_round(acc + 4, acc + 4)
    a(f"v_lshlrev_b32 v{acc+8}, 16, v{acc+8}")
    a(f"v_add_f32 v{acc}, v{acc+8}, v{acc}")
    bf16_round(acc, acc)
    a(f"v_add_f32 v{acc}, v{acc}, v{acc+4}")
    a(f"v_cvt_pk_bf16_f32 v{acc}, v{acc}, v{acc}")
    a(f"s_mov_b64 exec, s[{sSave}:{sSave+1}]")
    a(f"buffer_store_short v{acc}, v{t+4}, s[{sR1}:{sR1+3}], 0 offen")
    a("s_mov_b64 exec, -1")
    a(f"s_cmp_eq_u32 s{sCB}, 0")
    a("s_cbranch_scc0 L_fin")
    srd(sR0, sWs, off_imm=WS_EPOCH, size=4)
    a(f"v_mov_b32 v{t}, 0")
    a(f"v_mov_b32 v{t+1}, s{sTag}")
    a("s_mov_b64 exec, 1")
    a(f"buffer_store_dword v{t+1}, v{t}, s[{sR0}:{sR0+3}], 0 offen")
    a("s_mov_b64 exec, -1")
    a("L_fin:")
    if stamps:
        stamp(10)
        a("s_waitcnt lgkmcnt(0)")
        a(f"s_lshl_b32 s{sT}, s2, 2")
        a(f"s_add_u32 s{sT}, s{sT}, s{sWave}")
        a(f"s_lshl_b32 s{sT}, s{sT}, 6")
        a(f"s_add_u32 s{sT}, s{sT}, {WS_STAMP}")
        srd(sR0, sWs, off_s=sT, size=64)
        a("v_mov_b32 v28, 0")
        a("s_mov_b64 exec, 1")
        for i in range(11):
            a(f"v_mov_b32 v27, s{sSt+2*i}")
            a(f"buffer_store_dword v27, v28, s[{sR0}:{sR0+3}], 0 offen offset:{4*i}")
            a("s_nop 1")
        a(f"s_getreg_b32 s{sT}, hwreg(HW_REG_XCC_ID)")
        a(f"v_mov_b32 v27, s{sT}")
        a(f"buffer_store_dword v27, v28, s[{sR0}:{sR0+3}], 0 offen offset:60")
    a("L_end:")
    a("s_endpgm")

    head = HEADER + f"; @launch grid=(256,1,1) block=(256,1,1) lds={LDS_BYTES}\n"
    head += '.amdgcn_target "amdgcn-amd-amdhsa--gfx950"\n.text\n'
    head += f".globl {KN}_kernel\n.p2align 8\n.type {KN}_kernel,@function\n"
    tail = f""".section .rodata,"a"
.p2align 6
.amdhsa_kernel {KN}_kernel
  .amdhsa_next_free_vgpr 512
  .amdhsa_next_free_sgpr 102
  .amdhsa_accum_offset 256
  .amdhsa_group_segment_fixed_size 0
  .amdhsa_kernarg_size 96
  .amdhsa_user_sgpr_count 2
  .amdhsa_user_sgpr_kernarg_segment_ptr 1
  .amdhsa_system_sgpr_workgroup_id_x 1
.end_amdhsa_kernel
"""
    return head + a.text() + tail


if __name__ == "__main__":
    import argparse
    ap = argparse.ArgumentParser()
    ap.add_argument("-o", default="k.s")
    ap.add_argument("--G0", type=int, default=6)
    ap.add_argument("--G", type=int, default=2)
    ap.add_argument("--streamers", default="1,2")
    ap.add_argument("--stamps", action="store_true")
    ap.add_argument("--pfi", type=int, default=None)
    ap.add_argument("--a0mode", default="issue")
    ap.add_argument("--exp", default="")
    ap.add_argument("--static", action="store_true")
    ap.add_argument("--sleep_mid", type=int, default=16)
    ap.add_argument("--sleep_tail", type=int, default=1)
    ap.add_argument("--sleep_q", type=int, default=1)
    ap.add_argument("--NPRE", type=int, default=64)
    ap.add_argument("--NPM", type=int, default=48)
    ap.add_argument("--codepf", action="store_true")
    ap.add_argument("--qmask", action="store_true")
    ap.add_argument("--GUK", type=int, default=14)
    ap.add_argument("--DNR", type=int, default=16)
    ap.add_argument("--wflags", default="nt")
    ap.add_argument("--noroll", action="store_true")
    ap.add_argument("--LA", type=int, default=6)
    args = ap.parse_args()
    s = gen(G=args.G, G0=args.G0, streamers=tuple(int(x) for x in args.streamers.split(",")), stamps=args.stamps, pfi=args.pfi,
            a0mode=args.a0mode, exp=args.exp, dyn=not args.static, sleep_mid=args.sleep_mid, sleep_tail=args.sleep_tail, sleep_q=args.sleep_q, NPRE=args.NPRE, NPM=args.NPM, codepf=args.codepf, qmask=args.qmask, GUK=args.GUK, DNR=args.DNR, LA=args.LA, wflags=args.wflags, roll=not args.noroll)
    open(args.o, "w").write(s)
```

```python
import sys, math, struct

KN = "parallel_sum__gqa_block_cached__glu_gated_reglu__decode"

HEADER = """; Kernarg layout for this problem (96 bytes, ptrs only, base s[0:1]):
"""

WS_EPOCH = 0x0
WS_CT = 0x8000
WS_QG = 0x10000
WS_GG = 0x20000
WS_FA = 0x40000
WS_STAMP = 0x100000
WS_PG = 0x200000
WS_FB = 0x400000

L_Q = 0x0000
L_ST = 0x0410
L_FIN = 0x0480
L_B = 0x0780
L_H = 0x0680
L_XN = 0x0800
L_RED = 0x1000
L_HEAD = 0x0400
L_QUE = 0x3000
LDS_BYTES = 0x4800
EMPTY = 0xFFFFFFFF

TILES = 1024
LIMIT = TILES * 8192
SC = math.log2(math.e) / 16.0
MAXSPIN = 1 << 16


def f2u(f):
    return struct.unpack("<I", struct.pack("<f", f))[0]


class A:
    def __init__(self):
        self.L = []
        self.n = 0

    def __call__(self, s):
        for line in s.strip("\n").split("\n"):
            line = line.strip()
            self.L.append(line if line.endswith(":") else "  " + line)

    def label(self, p="L"):
        self.n += 1
        return f"{p}_{self.n}"

    def text(self):
        return "\n".join(self.L) + "\n"


def gen(G=2, G0=6, streamers=(1, 2), stamps=False, kflags="nt", vflags="nt", sleep_mid=16, sleep_q=1, sleep_tail=1,
        wflags="", a0mode="issue", prio=True, pfi=None, exp="", dyn=True, NPRE=64, LA=6, sleep_feed=4, roll=True, NPM=48, GUK=14, DNR=16, codepf=False, qmask=False, hist=False, pre_groups=0, mflags=None):
    a = A()
    if mflags is None:
        mflags = wflags
    assert G <= G0 <= 13 and (G0 <= 7 or pfi is not None)
    NS = len(streamers)
    sX, sKp, sVp, sWq, sWo, sWg, sWu, sWd, sOut, sDbg, sWs = 4, 6, 8, 10, 12, 16, 18, 20, 22, 24, 26
    sK, sV, sR0, sR1 = 28, 32, 36, 40
    sKap, sC, sWave, sTag, sE = 44, 45, 46, 47, 48
    sT = 49
    sQ = 56
    sPM = 64
    sSpin = 66
    sCB = 67
    sSave = 68
    sSt = 70
    sA1, sA2 = 92, 93
    sC1 = 94
    sJ = 95
    sCT = 96
    sNx, sCur = 100, 101
    vLane, vKoff, vVoff = 1, 2, 3
    vMask = 4
    vS = 8
    vO = 12
    vM, vL = 20, 21
    vT = 22
    vQ = 32
    vP = 64
    vIW = 80
    vW = 144
    vX = 8
    vA = 30
    vZ = 29
    vE, vAd, vTk, vOne, vHd = 80, 81, 82, 83, 84

    def stamp(i):
        if stamps:
            a(f"s_memrealtime s[{sSt+2*i}:{sSt+2*i+1}]")

    def srd(s, base, off_s=None, off_imm=0, size=None, size_s=None):
        if off_s is not None:
            a(f"s_add_u32 s{s}, s{base}, s{off_s}")
            a(f"s_addc_u32 s{s+1}, s{base+1}, 0")
        elif off_imm:
            a(f"s_add_u32 s{s}, s{base}, {off_imm}")
            a(f"s_addc_u32 s{s+1}, s{base+1}, 0")
        else:
            a(f"s_mov_b32 s{s}, s{base}")
            a(f"s_mov_b32 s{s+1}, s{base+1}")
        if size_s is not None:
            a(f"s_mov_b32 s{s+2}, s{size_s}")
        else:
            a(f"s_mov_b32 s{s+2}, {size}")
        a(f"s_mov_b32 s{s+3}, 0x00020000")

    def xrow_reduce(v, t, op):
        a(f"v_mov_b32 v{t}, v{v}")
        a("s_nop 1")
        a(f"v_permlane16_swap_b32 v{v}, v{t}")
        a("s_nop 1")
        a(f"{op} v{v}, v{v}, v{t}")
        a(f"v_mov_b32 v{t}, v{v}")
        a("s_nop 1")
        a(f"v_permlane32_swap_b32 v{v}, v{t}")
        a("s_nop 1")
        a(f"{op} v{v}, v{v}, v{t}")

    def row16_reduce(regs, op="v_add_f32"):
        for ctl in ("quad_perm:[1,0,3,2]", "quad_perm:[2,3,0,1]", "row_half_mirror", "row_mirror"):
            a("s_nop 1")
            for r in regs:
                a(f"{op}_dpp v{r}, v{r}, v{r} {ctl} row_mask:0xf bank_mask:0xf")

    def transposed_reduce(regs):
        n = len(regs) // 2
        a("s_nop 1")
        for i in range(n):
            a(f"v_permlane32_swap_b32 v{regs[i]}, v{regs[i+n]}")
        a("s_nop 1")
        for i in range(n):
            a(f"v_add_f32 v{regs[i]}, v{regs[i]}, v{regs[i+n]}")
        regs = regs[:n]
        n = n // 2
        a("s_nop 1")
        for i in range(n):
            a(f"v_permlane16_swap_b32 v{regs[i]}, v{regs[i+n]}")
        a("s_nop 1")
        for i in range(n):
            a(f"v_add_f32 v{regs[i]}, v{regs[i]}, v{regs[i+n]}")
        return regs[:n]

    def bf16_round(dst, src):
        a(f"v_cvt_pk_bf16_f32 v{dst}, v{src}, v{src}")
        a(f"v_lshlrev_b32 v{dst}, 16, v{dst}")

    def poll(loads, tagregs, tmp, lbl, sleep):
        L = a.label(lbl)
        Lok = a.label(lbl + "ok")
        a(f"s_mov_b32 s{sSpin}, 0")
        a(f"{L}:")
        loads()
        a("s_waitcnt vmcnt(0)")
        first = True
        for r in tagregs:
            if first:
                a(f"v_xor_b32 v{tmp}, s{sTag}, v{r}")
                first = False
            else:
                a(f"v_xor_b32 v{tmp+1}, s{sTag}, v{r}")
                a(f"v_or_b32 v{tmp}, v{tmp}, v{tmp+1}")
        a(f"v_cmp_ne_u32 vcc, 0, v{tmp}")
        a("s_nop 4")
        a(f"s_cbranch_vccz {Lok}")
        a(f"s_add_u32 s{sSpin}, s{sSpin}, 1")
        a(f"s_cmp_lt_u32 s{sSpin}, {MAXSPIN}")
        if sleep:
            a(f"s_sleep {sleep}")
        a(f"s_cbranch_scc1 {L}")
        a(f"{Lok}:")

    def poll_masked(nk, load_k, tags_k, tmp, lbl, sleep):
        L = a.label(lbl)
        Lok = a.label(lbl + "ok")
        sPend = sPM
        a(f"s_mov_b32 s{sSpin}, 0")
        a(f"s_mov_b32 s{sPend}, {(1 << nk) - 1}")
        a(f"{L}:")
        for k in range(nk):
            sk = a.label(lbl + "s")
            a(f"s_bitcmp1_b32 s{sPend}, {k}")
            a(f"s_cbranch_scc0 {sk}")
            load_k(k)
            a(f"{sk}:")
        a("s_waitcnt vmcnt(0)")
        for k in range(nk):
            tg = tags_k(k)
            if len(tg) == 1:
                a(f"v_cmp_ne_u32 vcc, s{sTag}, v{tg[0]}")
            else:
                a(f"v_xor_b32 v{tmp}, s{sTag}, v{tg[0]}")
                for r in tg[1:]:
                    a(f"v_xor_b32 v{tmp+1}, s{sTag}, v{r}")
                    a(f"v_or_b32 v{tmp}, v{tmp}, v{tmp+1}")
                a(f"v_cmp_ne_u32 vcc, 0, v{tmp}")
            a("s_nop 0")
            a("s_cmp_eq_u64 vcc, 0")
            a(f"s_cselect_b32 s{sPend+1}, {hex((~(1 << k)) & 0xffffffff)}, -1")
            a(f"s_and_b32 s{sPend}, s{sPend}, s{sPend+1}")
        a(f"s_cmp_eq_u32 s{sPend}, 0")
        a(f"s_cbranch_scc1 {Lok}")
        a(f"s_add_u32 s{sSpin}, s{sSpin}, 1")
        a(f"s_cmp_lt_u32 s{sSpin}, {MAXSPIN}")
        if sleep:
            a(f"s_sleep {sleep}")
        a(f"s_cbranch_scc1 {L}")
        a(f"{Lok}:")

    def publish48(acc, ws_off, t, nprod, sprod):
        q = vW
        for g in range(3):
            for i in range(3):
                k = 3 * g + i
                if k < 8:
                    a(f"v_mov_b32 v{q+4*g+i}, v{acc+k}")
                else:
                    a(f"v_mov_b32 v{q+4*g+i}, 0")
            a(f"v_mov_b32 v{q+4*g+3}, s{sTag}")
        a(f"s_mul_i32 s{sT}, s{sprod}, 2688")
        a(f"s_add_u32 s{sT}, s{sT}, {ws_off}")
        srd(sR0, sWs, off_s=sT, size=2688)
        a(f"v_lshlrev_b32 v{t}, 4, v{vLane}")
        a(f"s_mov_b32 s{sSave}, -1")
        a(f"s_mov_b32 s{sSave+1}, 0x00ffffff")
        a(f"s_mov_b64 exec, s[{sSave}:{sSave+1}]")
        for g in range(3):
            a(f"buffer_store_dwordx4 v[{q+4*g}:{q+4*g+3}], v{t}, s[{sR0}:{sR0+3}], 0 offen offset:{896*g} sc1")
        a("s_mov_b64 exec, -1")

    ntile0 = (G0 + 1) // 2
    T = 2 * (G0 - G)
    n0 = T
    tau0 = n0 // 2
    F = (G + 1) // 2
    NSTAT = max(tau0 + F + 1, ntile0)
    S0 = 24 * ntile0 + (NSTAT - ntile0) * 8 * NS
    if not dyn:
        NPRE = (TILES - S0 + 7) // 8 + 16
    if not dyn:
        NPM = NPRE
    NPM = min(NPM, NPRE)
    CT0 = S0 + 8 * NPRE
    CT0M = S0 + 8 * NPM + 7 * (NPRE - NPM)

    a(f"{KN}_kernel:")
    a("s_cmp_ge_u32 s2, 256")
    a("s_cbranch_scc1 L_end")
    if stamps:
        for i in range(22):
            a(f"s_mov_b32 s{sSt+i}, 0")
    stamp(0)
    a("s_load_dwordx16 s[4:19], s[0:1], 0")
    a("s_load_dwordx8 s[20:27], s[0:1], 64")
    a(f"v_and_b32 v{vLane}, 63, v0")
    a(f"v_lshrrev_b32 v{vT}, 6, v0")
    a(f"s_bfe_u32 s{sKap}, s2, 0x30003")
    a(f"s_lshr_b32 s{sC}, s2, 6")
    a(f"s_lshl_b32 s{sC}, s{sC}, 3")
    a(f"s_and_b32 s{sJ}, s2, 7")
    a(f"s_add_u32 s{sC}, s{sC}, s{sJ}")
    a(f"v_readfirstlane_b32 s{sWave}, v{vT}")
    a(f"s_cmp_eq_u32 s{sWave}, 0")
    a("s_cbranch_scc1 L_helper1")
    if codepf:
        a(f"s_cmp_eq_u32 s{sWave}, 3")
        a("s_cbranch_scc0 L_nocpf")
        a(f"s_getpc_b64 s[{sR0}:{sR0+1}]")
        a("L_pcref:")
        a(f"s_sub_u32 s{sR0}, s{sR0}, L_pcref-{KN}_kernel")
        a(f"s_subb_u32 s{sR0+1}, s{sR0+1}, 0")
        a(f"v_lshlrev_b32 v{vT+3}, 7, v{vLane}")
        for k in range(4):
            a(f"v_add_u32 v{vT+4}, {k*8192}, v{vT+3}")
            a(f"v_min_u32 v{vT+4}, L_end-{KN}_kernel, v{vT+4}")
            a(f"global_load_dword v{vT+5}, v{vT+4}, s[{sR0}:{sR0+1}]")
        a("L_nocpf:")
    a(f"v_and_b32 v{vT+1}, 15, v{vLane}")
    a(f"v_lshrrev_b32 v{vT+2}, 4, v{vLane}")
    a(f"v_lshlrev_b32 v{vKoff}, 9, v{vT+1}")
    a(f"v_lshl_add_u32 v{vKoff}, v{vT+2}, 4, v{vKoff}")
    a(f"v_lshlrev_b32 v{vVoff}, 11, v{vT+2}")
    a(f"v_lshl_add_u32 v{vVoff}, v{vT+1}, 4, v{vVoff}")
    a(f"s_lshl_b32 s{sT}, s{sKap}, 25")
    a(f"s_lshr_b32 s{sT+1}, s2, 6")
    a(f"s_lshl_b32 s{sT+1}, s{sT+1}, 23")
    a(f"s_add_u32 s{sT}, s{sT}, s{sT+1}")
    a(f"s_mul_i32 s{sA1}, s{sJ}, 3")
    a(f"s_add_u32 s{sA1}, s{sA1}, s{sWave}")
    a(f"s_sub_u32 s{sA1}, s{sA1}, 1")
    a(f"s_lshl_b32 s{sA1}, s{sA1}, 13")
    a(f"s_mov_b32 s{sQ}, s{sA1}")
    a("s_waitcnt lgkmcnt(0)")
    a(f"s_load_dword s{sE}, s[{sWs}:{sWs+1}], {WS_EPOCH}")
    srd(sK, sKp, off_s=sT, size=LIMIT)
    srd(sV, sVp, off_s=sT, size=LIMIT)
    if a0mode != "none" and pre_groups == 0:
        a("s_barrier")

    koff = lambda j: j * 64
    voff = lambda j: (j >> 1) * 512 + (j & 1) * 256

    def sreg(slot, j):
        if 'vslots' in exp:
            r = 96 + slot * 32 + j * 4
            return f"v[{r}:{r+3}]"
        if slot < 8:
            r = slot * 32 + j * 4
            return f"a[{r}:{r+3}]"
        r = 96 + (slot - 8) * 32 + j * 4
        return f"v[{r}:{r+3}]"

    def issue_group(n_is_k, slot, soff):
        for j in range(8):
            if n_is_k:
                a(f"buffer_load_dwordx4 {sreg(slot,j)}, v{vKoff}, s[{sK}:{sK+3}], s{soff} offen offset:{koff(j)} {kflags}")
            else:
                a(f"buffer_load_dwordx4 {sreg(slot,j)}, v{vVoff}, s[{sV}:{sV+3}], s{soff} offen offset:{voff(j)} {vflags}")

    for n in range(G0):
        if n % 2 == 0 and n > 0:
            a(f"s_add_u32 s{sQ}, s{sQ}, {24*8192}")
        issue_group(n % 2 == 0, n, sQ)
        if pre_groups and n == pre_groups - 1:
            a("s_barrier")
        if pfi is not None and n >= pfi and n < G0 - 1:
            a(f"s_waitcnt vmcnt({8*pfi})")
    stamp(1)
    a(f"v_and_b32 v{vT+6}, 1, v{vLane}")
    a(f"v_cmp_eq_u32 vcc, 1, v{vT+6}")
    a(f"v_mov_b32 v{vT+4}, 0xffff")
    a(f"v_mov_b32 v{vT+5}, 0xffff0000")
    a(f"v_cndmask_b32 v{vT+4}, v{vT+4}, v{vT+5}, vcc")
    a(f"v_bfe_u32 v{vT+6}, v{vLane}, 1, 2")
    for j in range(4):
        a(f"v_cmp_eq_u32 vcc, {j}, v{vT+6}")
        a("s_nop 1")
        a(f"v_cndmask_b32 v{vMask+j}, 0, v{vT+4}, vcc")
    a(f"v_mov_b32 v{vM}, {hex(f2u(-1e30))}")
    a(f"v_mov_b32 v{vL}, 0")
    for i in range(8):
        a(f"v_mov_b32 v{vO+i}, 0")
    smask = sum(1 << w for w in streamers)
    a(f"s_lshr_b32 s{sT}, {smask}, s{sWave}")
    a(f"s_and_b32 s{sPM}, s{sT}, 1")
    a(f"s_mov_b32 s{sPM+1}, 0")
    a(f"s_lshl_b32 s{sT}, 1, s{sWave}")
    a(f"s_sub_u32 s{sT}, s{sT}, 1")
    a(f"s_and_b32 s{sT}, s{sT}, {smask}")
    a(f"s_bcnt1_i32_b32 s{sT}, s{sT}")
    a(f"s_mul_i32 s{sA2}, s{sJ}, {NS}")
    a(f"s_add_u32 s{sA2}, s{sA2}, s{sT}")
    a(f"s_add_u32 s{sA2}, s{sA2}, {24*ntile0}")
    a(f"s_lshl_b32 s{sA2}, s{sA2}, 13")
    a(f"s_cmp_eq_u32 s{sPM}, 1")
    a(f"s_cselect_b32 s{sA2}, s{sA2}, {LIMIT}")
    a(f"v_mov_b32 v{vHd}, {L_HEAD}")
    a(f"v_mov_b32 v{vOne}, 1")
    a(f"s_mov_b32 s{sC1}, {hex(f2u(SC))}")
    a("s_waitcnt lgkmcnt(0)")
    a(f"s_mul_i32 s{sTag}, s{sE}, 0x9E3779B1")
    a(f"s_add_u32 s{sTag}, s{sTag}, 0x7F4A7C15")
    a("s_branch L_barB")

    a("L_helper1:")
    if prio:
        a("s_setprio 3")
    t = vT
    a(f"s_lshr_b32 s{sT+5}, s2, 3")
    a(f"s_lshl_b32 s{sT+5}, s{sT+5}, 2")
    a(f"s_add_u32 s{sT+5}, s{sT+5}, s{sJ}")
    a(f"s_lshr_b32 s{sT}, s{sT+5}, 1")
    a(f"s_lshl_b32 s{sT}, s{sT}, 7")
    a(f"s_lshl_b32 s{sT+3}, s{sT+5}, 9")
    a(f"s_add_u32 s{sT+3}, s{sT+3}, {WS_QG}")
    a(f"s_and_b32 s{sT+4}, s{sT+5}, 1")
    a(f"s_mov_b32 s{sT+1}, 8192")
    a(f"s_sub_u32 s{sT+2}, {448*8192}, s{sT}")
    a(f"s_cmp_lt_u32 s{sJ}, {0 if 'nounit' in exp else 4}")
    a(f"s_cselect_b32 s{sT+2}, s{sT+2}, 0")
    a(f"v_lshrrev_b32 v{t}, 3, v{vLane}")
    a(f"v_mul_lo_u32 v{t}, v{t}, s{sT+1}")
    a(f"v_and_b32 v{t+1}, 7, v{vLane}")
    a(f"v_lshl_add_u32 v{t}, v{t+1}, 4, v{t}")
    a(f"v_lshlrev_b32 v{t+2}, 1, v{vLane}")
    a(f"s_mul_i32 s{sQ}, s{sT+4}, 224")
    a(f"s_mul_i32 s{sQ}, s{sQ}, s{sT+1}")
    a(f"s_lshl_b32 s{sQ+1}, s{sT+1}, 3")
    a("s_waitcnt lgkmcnt(0)")
    a(f"s_load_dword s{sE}, s[{sWs}:{sWs+1}], {WS_EPOCH}")
    srd(sR1, sWq, off_s=sT, size_s=sT + 2)
    srd(sR0, sX, size=896)
    for k in range(7):
        a(f"buffer_load_ushort v{vX+k}, v{t+2}, s[{sR0}:{sR0+3}], 0 offen offset:{128*k}")
    for i in range(28):
        a(f"buffer_load_dwordx4 v[{vW+4*i}:{vW+4*i+3}], v{t}, s[{sR1}:{sR1+3}], s{sQ} offen {wflags}")
        if i < 27:
            a(f"s_add_u32 s{sQ}, s{sQ}, s{sQ+1}")
    if a0mode == "issue":
        a("s_barrier")
    stamp(1)
    a("s_waitcnt lgkmcnt(0)")
    a(f"s_mul_i32 s{sTag}, s{sE}, 0x9E3779B1")
    a(f"s_add_u32 s{sTag}, s{sTag}, 0x7F4A7C15")
    a(f"s_lshr_b32 s{sE}, s2, 3")
    a(f"s_cmp_lt_u32 s{sE}, {28 if NPM < NPRE else 0}")
    a(f"s_cselect_b32 s{sQ+2}, 7, 8")
    a(f"s_mov_b32 s{sQ+4}, {CT0}")
    a(f"s_cselect_b32 s{sQ+4}, {CT0M}, s{sQ+4}")
    a(f"s_cselect_b32 s{sQ+5}, 1, 0")
    a(f"s_cmp_gt_u32 s{sJ}, 4")
    a(f"s_cselect_b32 s{sQ+3}, s{sQ+5}, 0")
    a(f"s_sub_u32 s{sQ+3}, s{sJ}, s{sQ+3}")
    a(f"s_cmp_eq_u32 s{sJ}, 4")
    a(f"s_cselect_b32 s{sQ+5}, s{sQ+5}, 0")
    a(f"s_cmp_eq_u32 s{sQ+5}, 1")
    a(f"s_mov_b32 s{sA1}, {NPRE}")
    a(f"s_cselect_b32 s{sA1}, {NPM}, s{sA1}")
    a(f"s_cmp_eq_u32 s{sJ}, 0")
    a("s_cbranch_scc0 L_noctinit")
    a(f"s_lshr_b32 s{sE}, s2, 3")
    a(f"s_lshl_b32 s{sE}, s{sE}, 8")
    a(f"s_add_u32 s{sE}, s{sE}, {WS_CT}")
    srd(sCT, sWs, off_s=sE, size=8)
    a(f"v_mov_b32 v{vA}, s{sQ+4}")
    a(f"v_mov_b32 v{vA+1}, s{sTag}")
    a(f"v_mov_b32 v{vZ}, 0")
    a("s_mov_b64 exec, 1")
    a(f"buffer_store_dwordx2 v[{vA}:{vA+1}], v{vZ}, s[{sCT}:{sCT+3}], 0 offen sc1")
    a("s_mov_b64 exec, -1")
    a("s_waitcnt vmcnt(29)")
    a("s_branch L_ctdone")
    a("L_noctinit:")
    a("s_waitcnt vmcnt(28)")
    a("L_ctdone:")
    a(f"v_lshlrev_b32 v{t+3}, 4, v{vLane}")
    a(f"v_mov_b32 v{vP}, -1")
    a(f"v_mov_b32 v{vP+1}, -1")
    a(f"v_mov_b32 v{vP+2}, -1")
    a(f"v_mov_b32 v{vP+3}, -1")
    for i in range(4):
        a(f"ds_write_b128 v{t+3}, v[{vP}:{vP+3}] offset:{L_QUE + 1024*i}")
    a(f"v_lshlrev_b32 v{t+3}, 2, v{vLane}")
    a(f"ds_write_b32 v{t+3}, v{vP} offset:{L_QUE + 4096}")
    a(f"ds_write_b32 v{t+3}, v{vP} offset:{L_QUE + 4096 + 256}")
    a(f"s_add_u32 s{sE}, s{sJ}, {S0}")
    a(f"s_add_u32 s{sQ+3}, s{sQ+3}, {S0 + 8*NPM}")
    for blk in range((NPRE + 63) // 64):
        a(f"v_add_u32 v{vP+4}, {blk*64}, v{vLane}")
        a(f"v_lshlrev_b32 v{t+4}, 3, v{vP+4}")
        a(f"v_add_u32 v{t+4}, s{sE}, v{t+4}")
        a(f"v_subrev_u32 v{vP+5}, {NPM}, v{vP+4}")
        a(f"v_mul_lo_u32 v{vP+5}, v{vP+5}, s{sQ+2}")
        a(f"v_add_u32 v{vP+5}, s{sQ+3}, v{vP+5}")
        a(f"v_cmp_gt_u32 vcc, {NPM}, v{vP+4}")
        a("s_nop 1")
        a(f"v_cndmask_b32 v{t+4}, v{vP+5}, v{t+4}, vcc")
        a(f"v_cmp_gt_u32 vcc, s{sA1}, v{vP+4}")
        a("s_nop 1")
        a(f"v_cndmask_b32 v{t+4}, v{vP}, v{t+4}, vcc")
        a(f"ds_write_b32 v{t+3}, v{t+4} offset:{L_QUE + 256*blk}")
    a(f"v_mov_b32 v{t+4}, 0")
    a(f"v_mov_b32 v{t+3}, {L_HEAD}")
    a(f"ds_write_b32 v{t+3}, v{t+4}")
    if 'noq' in exp:
        a(f"v_mov_b32 v{vM}, {hex(f2u(-1e30))}")
        a(f"v_mov_b32 v{vL}, 0")
        for i in range(8):
            a(f"v_mov_b32 v{vO+i}, 0")
        a("s_waitcnt vmcnt(0) lgkmcnt(0)")
        a("s_setprio 0")
        a("s_branch L_barB")
    for k in range(7):
        a(f"v_lshlrev_b32 v{vX+k}, 16, v{vX+k}")
    u = vQ
    a(f"v_add_f32 v{u}, v{vX}, v{vX+1}")
    for k in range(2, 7):
        a(f"v_add_f32 v{u}, v{u}, v{vX+k}")
    row16_reduce([u])
    a("s_nop 1")
    xrow_reduce(u, u + 1, "v_add_f32")
    a(f"v_mul_f32 v{u}, {hex(f2u(1.0/448))}, v{u}")
    a(f"v_sub_f32 v{u+2}, v{vX}, v{u}")
    a(f"v_mul_f32 v{u+3}, v{u+2}, v{u+2}")
    for k in range(1, 7):
        a(f"v_sub_f32 v{u+2}, v{vX+k}, v{u}")
        a(f"v_fmac_f32 v{u+3}, v{u+2}, v{u+2}")
    row16_reduce([u + 3])
    a("s_nop 1")
    xrow_reduce(u + 3, u + 1, "v_add_f32")
    a(f"v_mul_f32 v{u+3}, {hex(f2u(1.0/448))}, v{u+3}")
    bf16_round(u + 3, u + 3)
    a(f"v_add_f32 v{u+3}, {hex(f2u(1e-5))}, v{u+3}")
    bf16_round(u + 3, u + 3)
    a(f"v_sqrt_f32 v{u+3}, v{u+3}")
    a("s_nop 0")
    bf16_round(u + 3, u + 3)
    bf16_round(u, u)
    a(f"v_rcp_f32 v{u+4}, v{u+3}")
    a("s_nop 0")
    for k in range(7):
        d = vX + k
        a(f"v_sub_f32 v{d}, v{d}, v{u}")
        bf16_round(d, d)
        a(f"v_mul_f32 v{u+5}, v{d}, v{u+4}")
        a(f"v_fma_f32 v{d}, -v{u+5}, v{u+3}, v{d}")
        a(f"v_fma_f32 v{d}, v{d}, v{u+4}, v{u+5}")
        bf16_round(d, d)
    a(f"v_lshlrev_b32 v{t+3}, 2, v{vLane}")
    for k in range(7):
        a(f"ds_write_b32 v{t+3}, v{vX+k} offset:{L_XN + 256*k}")
    a(f"v_lshrrev_b32 v{t+3}, 3, v{vLane}")
    a(f"v_lshlrev_b32 v{t+3}, 2, v{t+3}")
    a(f"s_mul_i32 s{sQ}, s{sT+4}, 896")
    a(f"v_add_u32 v{t+3}, s{sQ}, v{t+3}")
    a("s_waitcnt lgkmcnt(0)")
    xr = vQ + 4
    for i in range(28):
        a(f"ds_read_b32 v{xr+i}, v{t+3} offset:{L_XN + 32*i}")
    acc = vP
    for i in range(8):
        a(f"v_mov_b32 v{acc+i}, 0")
    a("s_waitcnt lgkmcnt(0)")
    for i in range(28):
        a(f"s_waitcnt vmcnt({27-i})")
        a(f"v_lshrrev_b32 v{t+4}, 16, v{xr+i}")
        for d in range(4):
            w = vW + 4 * i + d
            a(f"v_dot2_f32_bf16 v{acc+2*d}, v{w}, v{t+4}, v{acc+2*d}")
            a(f"v_dot2_f32_bf16 v{acc+2*d+1}, v{w}, v{xr+i}, v{acc+2*d+1}")
    if a0mode == "landed":
        a("s_barrier")
    rem = transposed_reduce([acc + i for i in range(8)])
    a("s_nop 1")
    for r in rem:
        a(f"v_add_f32_dpp v{r}, v{r}, v{r} row_ror:8 row_mask:0xf bank_mask:0xf")
    a(f"v_mov_b32 v{acc+4}, v{rem[0]}")
    a(f"v_mov_b32 v{acc+5}, s{sTag}")
    a(f"v_mov_b32 v{acc+6}, v{rem[1]}")
    a(f"v_mov_b32 v{acc+7}, s{sTag}")
    a(f"v_and_b32 v{t+3}, 7, v{vLane}")
    a(f"v_lshlrev_b32 v{t+3}, 6, v{t+3}")
    a(f"v_lshrrev_b32 v{t+4}, 4, v{vLane}")
    a(f"v_lshl_add_u32 v{t+3}, v{t+4}, 4, v{t+3}")
    a(f"s_cmp_lt_u32 s{sJ}, 4")
    a("s_cbranch_scc0 L_nopub")
    srd(sR0, sWs, off_s=sT + 3, size=512)
    a(f"s_mov_b32 s{sSave}, 0x00ff00ff")
    a(f"s_mov_b32 s{sSave+1}, 0x00ff00ff")
    a(f"s_mov_b64 exec, s[{sSave}:{sSave+1}]")
    a(f"buffer_store_dwordx4 v[{acc+4}:{acc+7}], v{t+3}, s[{sR0}:{sR0+3}], 0 offen sc1")
    a("s_mov_b64 exec, -1")
    a("L_nopub:")
    stamp(2)
    a(f"s_lshl_b32 s{sT}, s{sKap}, 13")
    a(f"s_add_u32 s{sT}, s{sT}, {WS_QG}")
    srd(sR0, sWs, off_s=sT, size=8192)
    a(f"v_lshlrev_b32 v{t}, 4, v{vLane}")
    a(f"s_mov_b32 s{sT+1}, 4096")
    qg = vW

    def qload(b):
        so = "0" if b < 4 else f"s{sT+1}"
        a(f"buffer_load_dwordx4 v[{qg+4*b}:{qg+4*b+3}], v{t}, s[{sR0}:{sR0+3}], {so} offen offset:{(b%4)*1024} sc1")
    if qmask:
        poll_masked(8, qload, lambda b: [qg + 4 * b + 1, qg + 4 * b + 3], t + 2, "L_pq", sleep_q)
    else:
        poll(lambda: [qload(b) for b in range(8)], [qg + 4 * b + k for b in range(8) for k in (1, 3)], t + 2, "L_pq", sleep_q)
    for b in range(8):
        a(f"v_permlane32_swap_b32 v{qg+4*b}, v{qg+4*b+2}")
    a("s_nop 1")
    for b in range(8):
        a(f"v_add_f32 v{qg+4*b}, v{qg+4*b}, v{qg+4*b+2}")
    for b in range(8):
        a(f"v_cvt_pk_bf16_f32 v{qg+4*b}, v{qg+4*b}, v{qg+4*b}")
    a(f"v_and_b32 v{t}, 31, v{vLane}")
    a(f"v_lshlrev_b32 v{t}, 2, v{t}")
    a(f"v_lshrrev_b32 v{t+1}, 5, v{vLane}")
    a(f"v_lshl_add_u32 v{t}, v{t+1}, 1, v{t}")
    for b in range(8):
        a(f"ds_write_b16 v{t}, v{qg+4*b} offset:{L_Q + 128*b}")
    a(f"v_mov_b32 v{vM}, {hex(f2u(-1e30))}")
    a(f"v_mov_b32 v{vL}, 0")
    for i in range(8):
        a(f"v_mov_b32 v{vO+i}, 0")
    a("s_waitcnt lgkmcnt(0)")
    if prio:
        a("s_setprio 0")
    a("L_barB:")
    a("s_barrier")
    stamp(3)
    a(f"s_lshr_b32 s{sCB}, s2, 3")
    a(f"s_cmp_eq_u32 s{sJ}, 5")
    a(f"s_cselect_b32 s{sCB}, s{sCB}, 255")
    a(f"s_cmp_eq_u32 s{sWave}, 0")
    a("s_cbranch_scc1 L_helper2")
    t = vT
    a(f"v_bfe_u32 v{t}, v{vLane}, 3, 1")
    a(f"v_lshlrev_b32 v{t}, 9, v{t}")
    a(f"v_lshrrev_b32 v{t+1}, 4, v{vLane}")
    a(f"v_lshl_add_u32 v{t}, v{t+1}, 4, v{t}")
    for j in range(8):
        a(f"ds_read_b128 v[{vQ+4*j}:{vQ+4*j+3}], v{t} offset:{L_Q + 64*j}")
    a("s_waitcnt lgkmcnt(0)")

    def qk(slot):
        for j in range(8):
            c = "0" if j == 0 else f"v[{vS}:{vS+3}]"
            a(f"v_mfma_f32_16x16x32_bf16 v[{vS}:{vS+3}], {sreg(slot,j)}, v[{vQ+4*j}:{vQ+4*j+3}], {c}")

    def softmax():
        t = vT
        if 'nosm' in exp:
            return
        a(f"v_cvt_pk_bf16_f32 v{t}, v{vS}, v{vS+1}")
        a(f"v_cvt_pk_bf16_f32 v{t+1}, v{vS+2}, v{vS+3}")
        a(f"v_lshlrev_b32 v{vS}, 16, v{t}")
        a(f"v_and_b32 v{vS+1}, 0xffff0000, v{t}")
        a(f"v_lshlrev_b32 v{vS+2}, 16, v{t+1}")
        a(f"v_and_b32 v{vS+3}, 0xffff0000, v{t+1}")
        a(f"v_max3_f32 v{t}, v{vS}, v{vS+1}, v{vS+2}")
        a(f"v_max_f32 v{t}, v{t}, v{vS+3}")
        xrow_reduce(t, t + 1, "v_max_f32")
        a(f"v_mul_f32 v{t}, s{sC1}, v{t}")
        a(f"v_max_f32 v{t}, v{t}, v{vM}")
        a(f"v_sub_f32 v{t+1}, v{vM}, v{t}")
        a(f"v_exp_f32 v{t+1}, v{t+1}")
        a(f"v_mov_b32 v{vM}, v{t}")
        for i in range(4):
            a(f"v_fma_f32 v{vS+i}, v{vS+i}, s{sC1}, -v{t}")
        for i in range(4):
            a(f"v_exp_f32 v{vS+i}, v{vS+i}")
        for i in range(8):
            a(f"v_mul_f32 v{vO+i}, v{vO+i}, v{t+1}")
        a(f"v_add_f32 v{t+2}, v{vS}, v{vS+1}")
        a(f"v_add_f32 v{t+3}, v{vS+2}, v{vS+3}")
        a(f"v_add_f32 v{t+2}, v{t+2}, v{t+3}")
        a(f"v_fma_f32 v{vL}, v{vL}, v{t+1}, v{t+2}")
        for i in range(4):
            a(f"v_cvt_pk_bf16_f32 v{t+2+i}, v{vS+i}, v{vS+i}")
        for i in range(4):
            for j in range(4):
                a(f"v_and_b32 v{vP+4*i+j}, v{t+2+i}, v{vMask+j}")

    def pv(slot):
        for i in range(4):
            for h in range(2):
                a(f"v_mfma_f32_16x16x32_bf16 v[{vO+4*h}:{vO+4*h+3}], {sreg(slot,i*2+h)}, v[{vP+4*i}:{vP+4*i+3}], v[{vO+4*h}:{vO+4*h+3}]")

    def static_tile(dst, tau):
        if tau < ntile0:
            a(f"s_add_u32 s{dst}, s{sA1}, {24*tau*8192}")
        else:
            a(f"s_add_u32 s{dst}, s{sA2}, {(tau-ntile0)*8*NS*8192}")

    slot_of_group = {n: n for n in range(G0)}
    issued = G0
    free = []
    treg = lambda tau: sQ + (tau % 8)
    got = set()

    def get_tile(tau):
        if tau not in got:
            got.add(tau)
            static_tile(treg(tau), tau)
    nissue = T - (G0 - G)
    issue_steps = set(2 * k + 1 for k in range(nissue))
    for n in range(n0):
        tau = n >> 1
        if n % 2 == 0 and tau >= ntile0:
            a(f"s_cmp_ge_u32 s{treg(tau)}, {LIMIT}")
            a("s_cbranch_scc1 L_loopend")
        a(f"s_waitcnt vmcnt({min(63, (issued-n-1)*8)})")
        if n % 2 == 0:
            qk(slot_of_group[n])
        else:
            a("s_nop 1")
            pv(slot_of_group[n])
        free.append(slot_of_group[n])
        if n in issue_steps:
            get_tile(issued >> 1)
            sl = free.pop(0)
            slot_of_group[issued] = sl
            issue_group(issued % 2 == 0, sl, treg(issued >> 1))
            issued += 1
        if n % 2 == 0:
            a("s_nop 7")
            softmax()
    assert issued == n0 + G
    sOf = sQ
    for i in range(F):
        get_tile(tau0 + i)
    for i in range(F):
        a(f"s_mov_b32 s{sT+i}, s{treg(tau0+i)}")
    for i in range(F):
        a(f"s_mov_b32 s{sOf+i}, s{sT+i}")
    static_tile(sT, tau0 + F)
    a(f"s_lshr_b32 s{sT}, s{sT}, 13")
    a(f"v_mov_b32 v{vE}, s{sT}")
    stamp(4)
    period_tiles = 1 if G == 2 else (G // 2 if G % 2 == 0 else G)
    slot_of = lambda n: slot_of_group[n0 + ((n - n0) % G)]
    W = 8 * G - 1
    empties = []

    def decode(idx):
        a("s_waitcnt lgkmcnt(0)")
        a(f"v_readfirstlane_b32 s{sT}, v{vE}")
        a("s_nop 0")
        a(f"s_cmp_eq_u32 s{sT}, -1")
        a(f"s_cbranch_scc1 L_empty{idx}")
        a(f"L_entryok{idx}:")
        a(f"s_min_u32 s{sT}, s{sT}, {TILES}")
        a(f"s_lshl_b32 s{sOf+F}, s{sT}, 13")
        empties.append(idx)

    def take_ticket():
        a(f"s_mov_b64 exec, s[{sPM}:{sPM+1}]")
        a(f"ds_add_rtn_u32 v{vTk}, v{vHd}, v{vOne}")
        a("s_mov_b64 exec, -1")

    def read_entry():
        a(f"s_mov_b64 exec, s[{sPM}:{sPM+1}]")
        a(f"v_lshlrev_b32 v{vTk}, 2, v{vTk}")
        a(f"ds_read_b32 v{vE}, v{vTk} offset:{L_QUE}")
        a(f"v_mov_b32 v{vAd}, v{vTk}")
        a("s_mov_b64 exec, -1")

    def ld(isk, slot, j, soff):
        if isk:
            a(f"buffer_load_dwordx4 {sreg(slot,j)}, v{vKoff}, s[{sK}:{sK+3}], s{soff} offen offset:{koff(j)} {kflags}")
        else:
            a(f"buffer_load_dwordx4 {sreg(slot,j)}, v{vVoff}, s[{sV}:{sV+3}], s{soff} offen offset:{voff(j)} {vflags}")

    a("L_loop:")
    for tl in range(period_tiles):
        n = n0 + 2 * tl
        a(f"s_cmp_ge_u32 s{sOf}, {LIMIT}")
        a("s_cbranch_scc1 L_loopend")
        if G % 2 == 0:
            decode(tl)
            take_ticket()
        else:
            take_ticket()
        m = n + G
        rel = (m >> 1) - (n >> 1)
        sl = slot_of(n)
        for j in range(8):
            a(f"s_waitcnt vmcnt({W})")
            c = "0" if j == 0 else f"v[{vS}:{vS+3}]"
            a(f"v_mfma_f32_16x16x32_bf16 v[{vS}:{vS+3}], {sreg(sl,j)}, v[{vQ+4*j}:{vQ+4*j+3}], {c}")
            ld(m % 2 == 0, sl, j, sOf + rel)
        a("s_nop 7")
        softmax()
        n += 1
        m = n + G
        rel = (m >> 1) - (n >> 1)
        sl = slot_of(n)
        if G % 2 == 0:
            a("s_waitcnt lgkmcnt(0)")
            read_entry()
        else:
            decode(tl)
            read_entry()
        for j in range(8):
            i, h = j >> 1, j & 1
            a(f"s_waitcnt vmcnt({W})")
            a(f"v_mfma_f32_16x16x32_bf16 v[{vO+4*h}:{vO+4*h+3}], {sreg(sl,j)}, v[{vP+4*i}:{vP+4*i+3}], v[{vO+4*h}:{vO+4*h+3}]")
            ld(m % 2 == 0, sl, j, sOf + rel)
        for i in range(F):
            a(f"s_mov_b32 s{sOf+i}, s{sOf+i+1}")
    a("s_branch L_loop")
    for idx in empties:
        a(f"L_empty{idx}:")
        if stamps:
            a(f"s_add_u32 s{sSt+4}, s{sSt+4}, 1")
        a(f"s_mov_b32 s{sSpin}, 0")
        a(f"L_emptyl{idx}:")
        a("s_sleep 1")
        a(f"ds_read_b32 v{vE}, v{vAd} offset:{L_QUE}")
        a("s_waitcnt lgkmcnt(0)")
        a(f"v_readfirstlane_b32 s{sT}, v{vE}")
        a("s_nop 0")
        a(f"s_cmp_eq_u32 s{sT}, -1")
        a(f"s_cbranch_scc0 L_entryok{idx}")
        if stamps:
            a(f"s_add_u32 s{sSt+5}, s{sSt+5}, 1")
        a(f"s_add_u32 s{sSpin}, s{sSpin}, 1")
        a(f"s_cmp_lt_u32 s{sSpin}, {MAXSPIN*16}")
        a(f"s_cbranch_scc1 L_emptyl{idx}")
        a(f"s_mov_b32 s{sT}, {TILES}")
        a(f"s_branch L_entryok{idx}")
    a("L_loopend:")
    a("s_waitcnt vmcnt(0)")
    a("s_branch L_combine")

    a("L_helper2:")
    t = vT
    if 'nomlp' in exp:
        a("s_branch L_feed")
    a(f"s_lshl_b32 s{sT}, s{sKap}, 9")
    a(f"s_lshl_b32 s{sT+1}, s{sC}, 4")
    a(f"s_add_u32 s{sT}, s{sT}, s{sT+1}")
    a(f"s_mul_i32 s{sT}, s{sT}, 896")
    srd(sR0, sWo, off_s=sT, size=16 * 896)
    a(f"v_lshlrev_b32 v{t}, 4, v{vLane}")
    wr = 144
    for r in range(16):
        a(f"s_mov_b32 s{sT+1}, {r*896}")
        a(f"buffer_load_dwordx4 v[{wr+4*r}:{wr+4*r+3}], v{t}, s[{sR0}:{sR0+3}], s{sT+1} offen {wflags}")
    a(f"s_mov_b32 s{sT}, 0x05040100")
    a(f"s_mov_b32 s{sT+1}, 0x07060302")
    a("s_waitcnt vmcnt(0)")
    for pr in range(8):
        r0 = wr + (2 * pr) * 4
        r1 = r0 + 4
        for d in range(4):
            o = vIW + pr * 8 + 2 * d
            a(f"v_perm_b32 v{o}, v{r1+d}, v{r0+d}, s{sT}")
            a(f"v_perm_b32 v{o+1}, v{r1+d}, v{r0+d}, s{sT+1}")
    sM = sQ + 2
    a(f"s_lshr_b32 s{sM}, s2, 3")
    a(f"s_cmp_eq_u32 s{sJ}, 4")
    a(f"s_cselect_b32 s{sM}, s{sM}, 255")
    a(f"s_cmp_lt_u32 s{sM}, {0 if 'nomlp2' in exp else 28}")
    a("s_cbranch_scc0 L_nomlp")
    a(f"s_lshl_b32 s{sT}, s{sM}, 7")
    if 'mlpc' in exp:
        a(f"s_mul_i32 s{sT}, s{sM}, 57344")
    a(f"s_sub_u32 s{sT+1}, {448*3584}, s{sT}")
    if 'guoob' in exp:
        a(f"s_mov_b32 s{sT+1}, 0")
    srd(sR0, sWg, off_s=sT, size_s=sT + 1)
    srd(sR1, sWu, off_s=sT, size_s=sT + 1)
    a(f"v_lshrrev_b32 v{t}, 3, v{vLane}")
    a(f"v_lshlrev_b32 v{t+1}, 2, v{t}")
    a(f"v_mul_u32_u24 v{t}, {128 if 'mlpc' in exp else 3584}, v{t}")
    a(f"v_and_b32 v{t+2}, 7, v{vLane}")
    a(f"v_lshl_add_u32 v{t}, v{t+2}, 4, v{t}")
    acc = vP
    for i in range(16):
        a(f"v_mov_b32 v{acc+i}, 0")
    a(f"s_mov_b32 s{sQ}, 0")
    a(f"s_mov_b32 s{sQ+1}, 0")
    a("L_gu:")
    for k in range(GUK):
        a(f"buffer_load_dwordx4 v[{vW+8*k}:{vW+8*k+3}], v{t}, s[{sR0}:{sR0+3}], s{sQ} offen {mflags}")
        a(f"buffer_load_dwordx4 v[{vW+8*k+4}:{vW+8*k+7}], v{t}, s[{sR1}:{sR1+3}], s{sQ} offen {mflags}")
        a(f"s_add_u32 s{sQ}, s{sQ}, {1024 if 'mlpc' in exp else 8*3584}")
    for k in range(GUK):
        a(f"ds_read_b32 v{vQ+k}, v{t+1} offset:{L_XN + 32*k}")
    a(f"v_add_u32 v{t+1}, {32*GUK}, v{t+1}")
    a("s_waitcnt lgkmcnt(0)")
    for k in range(GUK):
        a(f"s_waitcnt vmcnt({2*(GUK-1-k)})")
        a(f"v_lshrrev_b32 v{t+2}, 16, v{vQ+k}")
        for mtx in range(2):
            for d in range(4):
                w = vW + 8 * k + 4 * mtx + d
                a(f"v_dot2_f32_bf16 v{acc+8*mtx+2*d}, v{w}, v{t+2}, v{acc+8*mtx+2*d}")
                a(f"v_dot2_f32_bf16 v{acc+8*mtx+2*d+1}, v{w}, v{vQ+k}, v{acc+8*mtx+2*d+1}")
    a(f"s_add_u32 s{sQ+1}, s{sQ+1}, 1")
    a(f"s_cmp_lt_u32 s{sQ+1}, {1 if 'gu1' in exp else 56//GUK}")
    a("s_cbranch_scc1 L_gu")
    rem = transposed_reduce([acc + i for i in range(16)])
    a("s_nop 1")
    for r in rem:
        a(f"v_add_f32_dpp v{r}, v{r}, v{r} row_ror:8 row_mask:0xf bank_mask:0xf")
    for i in range(4):
        a(f"v_mov_b32 v{acc+4+i}, v{rem[i]}")
    a("s_nop 1")
    for i in range(4):
        a(f"v_permlane32_swap_b32 v{rem[i]}, v{acc+4+i}")
    a("s_nop 1")
    for i in range(4):
        bf16_round(rem[i], rem[i])
        bf16_round(acc + 4 + i, acc + 4 + i)
        a(f"v_max_f32 v{rem[i]}, 0, v{rem[i]}")
        a(f"v_mul_f32 v{rem[i]}, v{rem[i]}, v{acc+4+i}")
        bf16_round(rem[i], rem[i])
    a(f"v_and_b32 v{t}, 7, v{vLane}")
    a(f"v_lshlrev_b32 v{t}, 5, v{t}")
    a(f"v_bfe_u32 v{t+1}, v{vLane}, 4, 1")
    a(f"v_lshl_add_u32 v{t}, v{t+1}, 4, v{t}")
    a(f"s_mov_b32 s{sSave}, -1")
    a(f"s_mov_b32 s{sSave+1}, 0")
    a(f"s_mov_b64 exec, s[{sSave}:{sSave+1}]")
    a(f"ds_write_b128 v{t}, v[{rem[0]}:{rem[3]}] offset:{L_H}")
    a("s_mov_b64 exec, -1")
    a(f"s_mul_i32 s{sT}, s{sM}, {64*896}")
    srd(sR0, sWd, off_s=sT, size=(0 if 'dnoob' in exp else 64 * 896))
    a(f"v_lshlrev_b32 v{t}, 4, v{vLane}")
    a(f"v_mov_b32 v{t+1}, 0")
    for i in range(8):
        a(f"v_mov_b32 v{acc+i}, 0")
    a(f"s_mov_b32 s{sQ}, 0")
    a(f"s_mov_b32 s{sQ+1}, 0")
    a("s_waitcnt lgkmcnt(0)")
    a("L_dn:")
    for r in range(DNR):
        a(f"buffer_load_dwordx4 v[{vW+4*r}:{vW+4*r+3}], v{t}, s[{sR0}:{sR0+3}], s{sQ} offen {mflags}")
        a(f"s_add_u32 s{sQ}, s{sQ}, 896")
    for q4 in range(DNR // 4):
        a(f"ds_read_b128 v[{vQ+4*q4}:{vQ+4*q4+3}], v{t+1} offset:{L_H + 16*q4}")
    a(f"v_add_u32 v{t+1}, {4*DNR}, v{t+1}")
    a("s_waitcnt lgkmcnt(0)")
    for r in range(DNR):
        a(f"s_waitcnt vmcnt({DNR-1-r})")
        a(f"v_lshrrev_b32 v{t+2}, 16, v{vQ+r}")
        for d in range(4):
            w = vW + 4 * r + d
            a(f"v_dot2_f32_bf16 v{acc+2*d}, v{w}, v{t+2}, v{acc+2*d}")
            a(f"v_dot2_f32_bf16 v{acc+2*d+1}, v{w}, v{vQ+r}, v{acc+2*d+1}")
    a(f"s_add_u32 s{sQ+1}, s{sQ+1}, 1")
    a(f"s_cmp_lt_u32 s{sQ+1}, {1 if 'dn1' in exp else 64//DNR}")
    a("s_cbranch_scc1 L_dn")
    if 'nofbp' not in exp:
        publish48(acc, WS_FB, t, 28, sM)
    a("L_nomlp:")
    a(f"s_cmp_lt_u32 s{sCB}, {0 if 'nofbg' in exp else 21}")
    a("s_cbranch_scc0 L_feed")
    a(f"s_lshl_b32 s{sT}, s{sCB}, 7")
    a(f"s_add_u32 s{sT}, s{sT}, {WS_FB}")
    srd(sR0, sWs, off_s=sT, size=28 * 2688)
    a(f"v_lshrrev_b32 v{t}, 3, v{vLane}")
    a(f"v_and_b32 v{t+1}, 7, v{vLane}")
    a(f"v_lshlrev_b32 v{t+1}, 4, v{t+1}")
    fb = 144
    for k in range(4):
        a(f"v_add_u32 v{t+4}, {8*k}, v{t}")
        a(f"v_min_u32 v{t+4}, 27, v{t+4}")
        a(f"v_mul_u32_u24 v{t+4}, 2688, v{t+4}")
        a(f"v_add_u32 v{fb+16+k}, v{t+4}, v{t+1}")

    def fbloads():
        for k in range(4):
            a(f"buffer_load_dwordx4 v[{fb+4*k}:{fb+4*k+3}], v{fb+16+k}, s[{sR0}:{sR0+3}], 0 offen sc1")
    poll(fbloads, [fb + 4 * k + 3 for k in range(4)], t + 2, "L_pfb", sleep_mid)
    acc = vP
    a(f"v_cmp_gt_u32 vcc, 4, v{t}")
    a("s_nop 1")
    for c in range(3):
        a(f"v_cndmask_b32 v{acc+c}, 0, v{fb+12+c}, vcc")
        a(f"v_add_f32 v{acc+c}, v{acc+c}, v{fb+c}")
        a(f"v_add_f32 v{t+2}, v{fb+4+c}, v{fb+8+c}")
        a(f"v_add_f32 v{acc+c}, v{acc+c}, v{t+2}")
    a("s_nop 1")
    for c in range(3):
        a(f"v_add_f32_dpp v{acc+c}, v{acc+c}, v{acc+c} row_ror:8 row_mask:0xf bank_mask:0xf")
    for c in range(3):
        xrow_reduce(acc + c, t + 2, "v_add_f32")
    a(f"v_mov_b32 v{acc+3}, 0")
    a(f"ds_write_b128 v{t+1}, v[{acc}:{acc+3}] offset:{L_B}")
    a("s_waitcnt lgkmcnt(0)")
    a("L_feed:")
    stamp(4)
    if dyn:
        t = vT
        sF, sN = sQ, sQ + 1
        a(f"s_lshr_b32 s{sT}, s2, 3")
        a(f"s_lshl_b32 s{sT}, s{sT}, 8")
        a(f"s_add_u32 s{sT}, s{sT}, {WS_CT}")
        srd(sCT, sWs, off_s=sT, size=8)
        a(f"v_mov_b32 v{vZ}, 0")
        a(f"v_mov_b32 v{t}, {L_HEAD}")
        a(f"s_mov_b32 s{sF}, s{sA1}")
        if hist:
            a(f"v_mov_b32 v26, 0")
            a(f"s_mov_b32 s{sQ+3}, 0")
        a(f"s_mov_b32 s{sSpin}, 0")
        a("L_feedloop:")
        a(f"ds_read_b32 v{t+1}, v{t}")
        a("s_waitcnt lgkmcnt(0)")
        a(f"v_readfirstlane_b32 s{sN}, v{t+1}")
        if hist:
            a(f"s_lshr_b32 s{sQ+2}, s{sN}, 2")
            a(f"s_cmp_gt_u32 s{sQ+2}, s{sQ+3}")
            a("s_cbranch_scc0 L_nohist")
            a(f"s_mov_b32 s{sQ+3}, s{sQ+2}")
            a(f"s_memrealtime s[{sQ+4}:{sQ+5}]")
            a("s_waitcnt lgkmcnt(0)")
            a(f"s_min_u32 s{sQ+2}, s{sQ+2}, 63")
            a(f"s_mov_b32 m0, s{sQ+2}")
            a(f"v_writelane_b32 v26, s{sQ+4}, m0")
            a("L_nohist:")
        a(f"s_add_u32 s{sN}, s{sN}, {LA}")
        a(f"s_sub_i32 s{sN}, s{sN}, s{sF}")
        a(f"s_cmp_gt_i32 s{sN}, 0")
        a("s_cbranch_scc1 L_feedgo")
        a(f"s_sleep {sleep_feed}")
        a(f"s_add_u32 s{sSpin}, s{sSpin}, 1")
        a(f"s_cmp_lt_u32 s{sSpin}, {MAXSPIN*16}")
        a("s_cbranch_scc1 L_feedloop")
        a("s_branch L_feedend")
        a("L_feedgo:")
        a(f"s_min_u32 s{sN}, s{sN}, 8")
        a("L_feedretry:")
        a("s_mov_b64 exec, 1")
        a(f"v_mov_b32 v{vA}, s{sN}")
        a(f"v_mov_b32 v{vA+1}, 0")
        a(f"buffer_atomic_add_x2 v[{vA}:{vA+1}], v{vZ}, s[{sCT}:{sCT+3}], 0 offen sc0")
        a("s_mov_b64 exec, -1")
        a("s_waitcnt vmcnt(0)")
        a(f"v_readfirstlane_b32 s{sT+1}, v{vA+1}")
        a(f"v_readfirstlane_b32 s{sT}, v{vA}")
        a(f"s_cmp_eq_u32 s{sT+1}, s{sTag}")
        a("s_cbranch_scc1 L_feedok")
        a(f"s_add_u32 s{sSpin}, s{sSpin}, 1")
        a(f"s_cmp_lt_u32 s{sSpin}, {MAXSPIN*16}")
        a("s_cbranch_scc1 L_feedretry")
        a(f"s_mov_b32 s{sT}, {TILES}")
        a("L_feedok:")
        a(f"s_add_u32 s{sT+2}, s{sT}, s{sN}")
        a(f"s_cmp_ge_u32 s{sT+2}, {TILES}")
        a(f"s_cselect_b32 s{sN}, 32, s{sN}")
        a(f"v_add_u32 v{t+2}, s{sT}, v{vLane}")
        a(f"v_add_u32 v{t+3}, s{sF}, v{vLane}")
        a(f"v_lshlrev_b32 v{t+3}, 2, v{t+3}")
        a(f"s_lshl_b64 s[{sSave}:{sSave+1}], 1, s{sN}")
        a(f"s_sub_u32 s{sSave}, s{sSave}, 1")
        a(f"s_subb_u32 s{sSave+1}, s{sSave+1}, 0")
        a(f"s_mov_b64 exec, s[{sSave}:{sSave+1}]")
        a(f"ds_write_b32 v{t+3}, v{t+2} offset:{L_QUE}")
        a("s_mov_b64 exec, -1")
        a(f"s_add_u32 s{sF}, s{sF}, s{sN}")
        a(f"s_cmp_lt_u32 s{sT+2}, {TILES}")
        a("s_cbranch_scc1 L_feedloop")
        a("L_feedend:")
        a("s_waitcnt lgkmcnt(0)")
        if hist:
            a(f"s_lshl_b32 s{sT}, s2, 8")
            a(f"s_add_u32 s{sT}, s{sT}, 0x180000")
            srd(sR0, sWs, off_s=sT, size=256)
            a(f"v_lshlrev_b32 v27, 2, v{vLane}")
            a(f"buffer_store_dword v26, v27, s[{sR0}:{sR0+3}], 0 offen")

    a("L_combine:")
    stamp(5)
    t = vT
    xrow_reduce(vL, t, "v_add_f32")
    a(f"v_bfe_u32 v{t}, v{vLane}, 3, 1")
    a(f"v_lshlrev_b32 v{t+1}, 3, v{t}")
    a(f"s_lshl_b32 s{sT}, s{sWave}, 4")
    a(f"v_add_u32 v{t+1}, s{sT}, v{t+1}")
    a(f"ds_write_b64 v{t+1}, v[{vM}:{vM+1}] offset:{L_ST}")
    a(f"v_lshlrev_b32 v{t+3}, 10, v{t}")
    a(f"v_lshrrev_b32 v{t+4}, 4, v{vLane}")
    a(f"v_lshl_add_u32 v{t+3}, v{t+4}, 7, v{t+3}")
    a(f"v_and_b32 v{t+4}, 7, v{vLane}")
    a(f"v_lshl_add_u32 v{t+3}, v{t+4}, 2, v{t+3}")
    a(f"s_lshl_b32 s{sT}, s{sWave}, 11")
    a(f"v_add_u32 v{t+3}, s{sT}, v{t+3}")
    for h in range(2):
        for ii in range(4):
            a(f"ds_write_b32 v{t+3}, v{vO+4*h+ii} offset:{L_RED + h*512 + ii*32}")
    a(f"s_lshl_b32 s{sT}, s{sKap}, 5")
    a(f"s_add_u32 s{sT}, s{sT}, s{sC}")
    a(f"s_lshl_b32 s{sT}, s{sT}, 13")
    a(f"s_add_u32 s{sT}, s{sT}, {WS_PG}")
    srd(sR0, sWs, off_s=sT, size=8192)
    a(f"s_mov_b32 s{sT+1}, 4096")
    a("s_waitcnt lgkmcnt(0)")
    a("s_barrier")
    st = vP
    a(f"v_mov_b32 v{t+1}, 0")
    for w in range(1, 4):
        a(f"ds_read_b128 v[{st+4*w}:{st+4*w+3}], v{t+1} offset:{L_ST+16*w}")
    a(f"v_lshlrev_b32 v{t}, 2, v0")
    ov = vQ + 8
    for h in range(2):
        for w in range(1, 4):
            a(f"ds_read_b32 v{ov+3*h+w-1}, v{t} offset:{L_RED + w*2048 + h*1024}")
    a(f"v_lshlrev_b32 v{t}, 4, v0")
    a("s_waitcnt lgkmcnt(6)")
    g = vO
    for h in range(2):
        M = g + 4 * h + 1
        Lr = g + 4 * h + 2
        a(f"v_max3_f32 v{M}, v{st+4+2*h}, v{st+8+2*h}, v{st+12+2*h}")
        for w in range(1, 4):
            a(f"v_sub_f32 v{vQ+3*h+w-1}, v{st+4*w+2*h}, v{M}")
        for w in range(1, 4):
            a(f"v_exp_f32 v{vQ+3*h+w-1}, v{vQ+3*h+w-1}")
        a("s_nop 0")
        a(f"v_mul_f32 v{Lr}, v{vQ+3*h}, v{st+4+2*h+1}")
        for w in range(2, 4):
            a(f"v_fmac_f32 v{Lr}, v{vQ+3*h+w-1}, v{st+4*w+2*h+1}")
        a(f"v_mov_b32 v{g+4*h+3}, s{sTag}")
    a("s_waitcnt lgkmcnt(0)")
    for h in range(2):
        a(f"v_mul_f32 v{g+4*h}, v{vQ+3*h}, v{ov+3*h}")
        for w in range(2, 4):
            a(f"v_fmac_f32 v{g+4*h}, v{vQ+3*h+w-1}, v{ov+3*h+w-1}")
    a(f"buffer_store_dwordx4 v[{g}:{g+3}], v{t}, s[{sR0}:{sR0+3}], 0 offen sc1")
    a(f"buffer_store_dwordx4 v[{g+4}:{g+7}], v{t}, s[{sR0}:{sR0+3}], s{sT+1} offen sc1")
    stamp(6)
    if 'notail' in exp:
        a("s_branch L_fin")
    a(f"s_cmp_eq_u32 s{sWave}, 0")
    a("s_cbranch_scc0 L_s1done")
    a(f"s_lshl_b32 s{sT}, s{sKap}, 18")
    a(f"s_lshl_b32 s{sT+1}, s{sC}, 8")
    a(f"s_add_u32 s{sT}, s{sT}, s{sT+1}")
    a(f"s_add_u32 s{sT}, s{sT}, {WS_PG}")
    srd(sR0, sWs, off_s=sT, size=32 * 8192)
    a(f"v_lshrrev_b32 v{t}, 4, v{vLane}")
    a(f"v_lshlrev_b32 v{t}, 13, v{t}")
    a(f"v_and_b32 v{t+1}, 15, v{vLane}")
    a(f"v_lshl_add_u32 v{t}, v{t+1}, 4, v{t}")
    pg = 160

    for k in range(8):
        a(f"v_add_u32 v{pg+32+k}, {k*32768}, v{t}")

    def pload(k):
        a(f"buffer_load_dwordx4 v[{pg+4*k}:{pg+4*k+3}], v{pg+32+k}, s[{sR0}:{sR0+3}], 0 offen sc1")
    poll_masked(8, pload, lambda k: [pg + 4 * k + 3], t + 2, "L_pp", sleep_tail)
    stamp(7)
    a(f"v_max3_f32 v{t+1}, v{pg+1}, v{pg+5}, v{pg+9}")
    a(f"v_max3_f32 v{t+1}, v{t+1}, v{pg+13}, v{pg+17}")
    a(f"v_max3_f32 v{t+1}, v{t+1}, v{pg+21}, v{pg+25}")
    a(f"v_max_f32 v{t+1}, v{t+1}, v{pg+29}")
    xrow_reduce(t + 1, t + 2, "v_max_f32")
    for k in range(8):
        a(f"v_sub_f32 v{pg+4*k+1}, v{pg+4*k+1}, v{t+1}")
    for k in range(8):
        a(f"v_exp_f32 v{pg+4*k+1}, v{pg+4*k+1}")
    a("s_nop 0")
    a(f"v_mul_f32 v{t+3}, v{pg+1}, v{pg}")
    a(f"v_mul_f32 v{t+4}, v{pg+1}, v{pg+2}")
    for k in range(1, 8):
        a(f"v_fmac_f32 v{t+3}, v{pg+4*k+1}, v{pg+4*k}")
        a(f"v_fmac_f32 v{t+4}, v{pg+4*k+1}, v{pg+4*k+2}")
    xrow_reduce(t + 3, t + 2, "v_add_f32")
    xrow_reduce(t + 4, t + 2, "v_add_f32")
    a(f"v_rcp_f32 v{t+5}, v{t+4}")
    a("s_nop 0")
    a(f"v_mul_f32 v{t+6}, v{t+3}, v{t+5}")
    a(f"v_fma_f32 v{t+3}, -v{t+6}, v{t+4}, v{t+3}")
    a(f"v_fma_f32 v{t+3}, v{t+3}, v{t+5}, v{t+6}")
    a("s_nop 1")
    a(f"v_mov_b32_dpp v{t+4}, v{t+3} row_shl:1 row_mask:0xf bank_mask:0xf")
    a("s_nop 0")
    a(f"v_cvt_pk_bf16_f32 v{t+3}, v{t+3}, v{t+4}")
    a("s_nop 0")
    for i in range(8):
        a(f"v_readlane_b32 s{sQ+i}, v{t+3}, {2*i}")
    a("s_nop 1")
    acc = vP
    for pr in range(8):
        for c in range(8):
            c0 = "0" if pr == 0 else f"v{acc+c}"
            a(f"v_dot2_f32_bf16 v{acc+c}, v{vIW+pr*8+c}, s{sQ+pr}, {c0}")
    publish48(acc, WS_FA, t, 256, 2)
    a("L_s1done:")
    stamp(8)
    t = vT
    a(f"s_cmp_lt_u32 s{sCB}, 21")
    a("s_cbranch_scc0 L_fin")
    a("s_barrier")
    a(f"s_lshl_b32 s{sT}, s{sCB}, 7")
    a(f"s_add_u32 s{sT}, s{sT}, {WS_FA}")
    srd(sR0, sWs, off_s=sT, size=256 * 2688)
    a(f"v_lshrrev_b32 v{t}, 3, v0")
    a(f"v_and_b32 v{t+1}, 7, v{t}")
    a(f"v_lshrrev_b32 v{t}, 3, v{t}")
    a(f"v_lshl_add_u32 v{t}, v{t}, 6, v{t+1}")
    a(f"v_mul_u32_u24 v{t}, 2688, v{t}")
    a(f"v_and_b32 v{t+1}, 7, v{vLane}")
    a(f"v_lshlrev_b32 v{t+1}, 4, v{t+1}")
    a(f"v_add_u32 v{t}, v{t}, v{t+1}")
    fa = vQ

    for k in range(8):
        a(f"v_add_u32 v{vW+k}, {k*8*2688}, v{t}")

    def faload(k):
        a(f"buffer_load_dwordx4 v[{fa+4*k}:{fa+4*k+3}], v{vW+k}, s[{sR0}:{sR0+3}], 0 offen sc1")
    a(f"s_mul_i32 s{sT+3}, s{sCB}, 37")
    a(f"s_lshr_b32 s{sT+3}, s{sT+3}, 8")
    a(f"s_mul_i32 s{sT+4}, s{sT+3}, 7")
    a(f"s_sub_u32 s{sT+4}, s{sCB}, s{sT+4}")
    a(f"s_lshl_b32 s{sT+4}, s{sT+4}, 6")
    a(f"s_mul_i32 s{sT+5}, s{sT+3}, 3")
    a(f"s_add_u32 s{sT+4}, s{sT+4}, s{sT+5}")
    a(f"v_and_b32 v{t+4}, 7, v{vLane}")
    a(f"v_lshlrev_b32 v{t+4}, 3, v{t+4}")
    a(f"v_lshrrev_b32 v{t+5}, 3, v{vLane}")
    a(f"v_add_u32 v{t+4}, v{t+4}, v{t+5}")
    a(f"v_add_u32 v{t+4}, s{sT+4}, v{t+4}")
    a(f"v_lshlrev_b32 v{t+4}, 1, v{t+4}")
    a(f"v_add_u32 v{t+6}, s{sT+5}, v{t+5}")
    a(f"v_cmp_gt_u32 vcc, 8, v{t+6}")
    a(f"v_cmp_gt_u32 s[{sSave}:{sSave+1}], 3, v{t+5}")
    a("s_nop 1")
    a(f"s_and_b64 s[{sSave}:{sSave+1}], s[{sSave}:{sSave+1}], vcc")
    srd(sR1, sX, size=896)
    a(f"buffer_load_ushort v{vP+8}, v{t+4}, s[{sR1}:{sR1+3}], 0 offen")
    poll_masked(8, faload, lambda k: [fa + 4 * k + 3], t + 2, "L_pfa", sleep_tail)
    stamp(9)
    acc = vP
    for c in range(3):
        a(f"v_add_f32 v{acc+c}, v{fa+c}, v{fa+4+c}")
        a(f"v_add_f32 v{t+2}, v{fa+8+c}, v{fa+12+c}")
        a(f"v_add_f32 v{acc+c}, v{acc+c}, v{t+2}")
        a(f"v_add_f32 v{t+2}, v{fa+16+c}, v{fa+20+c}")
        a(f"v_add_f32 v{t+3}, v{fa+24+c}, v{fa+28+c}")
        a(f"v_add_f32 v{t+2}, v{t+2}, v{t+3}")
        a(f"v_add_f32 v{acc+c}, v{acc+c}, v{t+2}")
    a("s_nop 1")
    for c in range(3):
        a(f"v_add_f32_dpp v{acc+c}, v{acc+c}, v{acc+c} row_ror:8 row_mask:0xf bank_mask:0xf")
    for c in range(3):
        xrow_reduce(acc + c, t + 2, "v_add_f32")
    a(f"v_mov_b32 v{acc+3}, 0")
    a(f"s_lshl_b32 s{sT}, s{sWave}, 7")
    a(f"v_add_u32 v{t+2}, s{sT}, v{t+1}")
    a(f"ds_write_b128 v{t+2}, v[{acc}:{acc+3}] offset:{L_FIN}")
    srd(sR1, sOut, size=896)
    a("s_waitcnt lgkmcnt(0)")
    a("s_barrier")
    a(f"s_cmp_eq_u32 s{sWave}, 0")
    a("s_cbranch_scc0 L_fin")
    a(f"v_min_u32 v{t+5}, 3, v{t+5}")
    a(f"v_lshl_add_u32 v{t+1}, v{t+5}, 2, v{t+1}")
    for w in range(4):
        a(f"ds_read_b32 v{acc+w}, v{t+1} offset:{L_FIN+128*w}")
    a(f"ds_read_b32 v{acc+4}, v{t+1} offset:{L_B}")
    a("s_waitcnt vmcnt(0) lgkmcnt(0)")
    a(f"v_add_f32 v{acc}, v{acc}, v{acc+1}")
    a(f"v_add_f32 v{acc+2}, v{acc+2}, v{acc+3}")
    a(f"v_add_f32 v{acc}, v{acc}, v{acc+2}")
    bf16_round(acc, acc)
    bf16_round(acc + 4, acc + 4)
    a(f"v_lshlrev_b32 v{acc+8}, 16, v{acc+8}")
    a(f"v_add_f32 v{acc}, v{acc+8}, v{acc}")
    bf16_round(acc, acc)
    a(f"v_add_f32 v{acc}, v{acc}, v{acc+4}")
    a(f"v_cvt_pk_bf16_f32 v{acc}, v{acc}, v{acc}")
    a(f"s_mov_b64 exec, s[{sSave}:{sSave+1}]")
    a(f"buffer_store_short v{acc}, v{t+4}, s[{sR1}:{sR1+3}], 0 offen")
    a("s_mov_b64 exec, -1")
    a(f"s_cmp_eq_u32 s{sCB}, 0")
    a("s_cbranch_scc0 L_fin")
    srd(sR0, sWs, off_imm=WS_EPOCH, size=4)
    a(f"v_mov_b32 v{t}, 0")
    a(f"v_mov_b32 v{t+1}, s{sTag}")
    a("s_mov_b64 exec, 1")
    a(f"buffer_store_dword v{t+1}, v{t}, s[{sR0}:{sR0+3}], 0 offen")
    a("s_mov_b64 exec, -1")
    a("L_fin:")
    if stamps:
        stamp(10)
        a("s_waitcnt lgkmcnt(0)")
        a(f"s_lshl_b32 s{sT}, s2, 2")
        a(f"s_add_u32 s{sT}, s{sT}, s{sWave}")
        a(f"s_lshl_b32 s{sT}, s{sT}, 6")
        a(f"s_add_u32 s{sT}, s{sT}, {WS_STAMP}")
        srd(sR0, sWs, off_s=sT, size=64)
        a("v_mov_b32 v28, 0")
        a("s_mov_b64 exec, 1")
        for i in range(11):
            a(f"v_mov_b32 v27, s{sSt+2*i}")
            a(f"buffer_store_dword v27, v28, s[{sR0}:{sR0+3}], 0 offen offset:{4*i}")
            a("s_nop 1")
        a(f"v_mov_b32 v27, s{sSt+5}")
        a(f"buffer_store_dword v27, v28, s[{sR0}:{sR0+3}], 0 offen offset:44")
        a("s_nop 1")
        a(f"s_getreg_b32 s{sT}, hwreg(HW_REG_XCC_ID)")
        a(f"v_mov_b32 v27, s{sT}")
        a(f"buffer_store_dword v27, v28, s[{sR0}:{sR0+3}], 0 offen offset:60")
    a("L_end:")
    a("s_endpgm")

    head = HEADER + f"; @launch grid=(256,1,1) block=(256,1,1) lds={LDS_BYTES}\n"
    head += '.amdgcn_target "amdgcn-amd-amdhsa--gfx950"\n.text\n'
    head += f".globl {KN}_kernel\n.p2align 8\n.type {KN}_kernel,@function\n"
    tail = f""".section .rodata,"a"
.p2align 6
.amdhsa_kernel {KN}_kernel
  .amdhsa_next_free_vgpr 512
  .amdhsa_next_free_sgpr 102
  .amdhsa_accum_offset 256
  .amdhsa_group_segment_fixed_size 0
  .amdhsa_kernarg_size 96
  .amdhsa_user_sgpr_count 2
  .amdhsa_user_sgpr_kernarg_segment_ptr 1
  .amdhsa_system_sgpr_workgroup_id_x 1
.end_amdhsa_kernel
"""
    return head + a.text() + tail


if __name__ == "__main__":
    import argparse
    ap = argparse.ArgumentParser()
    ap.add_argument("-o", default="k.s")
    ap.add_argument("--G0", type=int, default=6)
    ap.add_argument("--G", type=int, default=2)
    ap.add_argument("--streamers", default="1,2")
    ap.add_argument("--stamps", action="store_true")
    ap.add_argument("--pfi", type=int, default=None)
    ap.add_argument("--a0mode", default="issue")
    ap.add_argument("--exp", default="")
    ap.add_argument("--static", action="store_true")
    ap.add_argument("--sleep_mid", type=int, default=16)
    ap.add_argument("--sleep_tail", type=int, default=1)
    ap.add_argument("--sleep_q", type=int, default=1)
    ap.add_argument("--NPRE", type=int, default=64)
    ap.add_argument("--NPM", type=int, default=48)
    ap.add_argument("--codepf", action="store_true")
    ap.add_argument("--qmask", action="store_true")
    ap.add_argument("--hist", action="store_true")
    ap.add_argument("--pre", type=int, default=0)
    ap.add_argument("--mflags", default=None)
    ap.add_argument("--GUK", type=int, default=14)
    ap.add_argument("--DNR", type=int, default=16)
    ap.add_argument("--wflags", default="nt")
    ap.add_argument("--noroll", action="store_true")
    ap.add_argument("--LA", type=int, default=6)
    args = ap.parse_args()
    s = gen(G=args.G, G0=args.G0, streamers=tuple(int(x) for x in args.streamers.split(",")), stamps=args.stamps, pfi=args.pfi,
            a0mode=args.a0mode, exp=args.exp, dyn=not args.static, sleep_mid=args.sleep_mid, sleep_tail=args.sleep_tail, sleep_q=args.sleep_q, NPRE=args.NPRE, NPM=args.NPM, codepf=args.codepf, qmask=args.qmask, hist=args.hist, pre_groups=args.pre, mflags=args.mflags, GUK=args.GUK, DNR=args.DNR, LA=args.LA, wflags=args.wflags, roll=not args.noroll)
    open(args.o, "w").write(s)
```

```python
import sys, math, struct

KN = "parallel_sum__gqa_block_cached__glu_gated_reglu__decode"

HEADER = """; Kernarg layout for this problem (96 bytes, ptrs only, base s[0:1]):
"""

DOC = '''; ---------------------------------------------------------------------------------------------
;  Cross-workgroup hand-offs use self-validating {data, tag} granules in d_ws (sc1 stores / sc1 loads);
; ---------------------------------------------------------------------------------------------
'''

WS_EPOCH = 0x0
WS_CT = 0x8000
WS_QG = 0x10000
WS_GG = 0x20000
WS_FA = 0x40000
WS_STAMP = 0x100000
WS_PG = 0x200000
WS_FB = 0x400000

L_Q = 0x0000
L_ST = 0x0410
L_FIN = 0x0480
L_B = 0x0780
L_H = 0x0680
L_XN = 0x0800
L_RED = 0x1000
L_HEAD = 0x0400
L_QUE = 0x3000
LDS_BYTES = 0x4800
EMPTY = 0xFFFFFFFF

TILES = 1024
LIMIT = TILES * 8192
SC = math.log2(math.e) / 16.0
MAXSPIN = 1 << 16


def f2u(f):
    return struct.unpack("<I", struct.pack("<f", f))[0]


class A:
    def __init__(self):
        self.L = []
        self.n = 0

    def __call__(self, s):
        for line in s.strip("\n").split("\n"):
            line = line.strip()
            self.L.append(line if line.endswith(":") else "  " + line)

    def label(self, p="L"):
        self.n += 1
        return f"{p}_{self.n}"

    def text(self):
        return "\n".join(self.L) + "\n"


def gen(G=2, G0=6, streamers=(1, 2), stamps=False, kflags="nt", vflags="nt", sleep_mid=16, sleep_q=1, sleep_tail=1,
        wflags="", a0mode="issue", prio=True, pfi=None, exp="", dyn=True, NPRE=64, LA=6, sleep_feed=4, roll=True, NPM=48, GUK=14, DNR=16, codepf=False, qmask=False, hist=False, pre_groups=0, mflags=None, LA2=None, LAX=48):
    a = A()
    if mflags is None:
        mflags = wflags
    assert G <= G0 <= 13 and (G0 <= 7 or pfi is not None)
    NS = len(streamers)
    sX, sKp, sVp, sWq, sWo, sWg, sWu, sWd, sOut, sDbg, sWs = 4, 6, 8, 10, 12, 16, 18, 20, 22, 24, 26
    sK, sV, sR0, sR1 = 28, 32, 36, 40
    sKap, sC, sWave, sTag, sE = 44, 45, 46, 47, 48
    sT = 49
    sQ = 56
    sPM = 64
    sSpin = 66
    sCB = 67
    sSave = 68
    sSt = 70
    sA1, sA2 = 92, 93
    sC1 = 94
    sJ = 95
    sCT = 96
    sNx, sCur = 100, 101
    vLane, vKoff, vVoff = 1, 2, 3
    vMask = 4
    vS = 8
    vO = 12
    vM, vL = 20, 21
    vT = 22
    vQ = 32
    vP = 64
    vIW = 80
    vW = 144
    vX = 8
    vA = 30
    vZ = 29
    vE, vAd, vTk, vOne, vHd = 80, 81, 82, 83, 84

    def stamp(i):
        if stamps:
            a(f"s_memrealtime s[{sSt+2*i}:{sSt+2*i+1}]")

    def srd(s, base, off_s=None, off_imm=0, size=None, size_s=None):
        if off_s is not None:
            a(f"s_add_u32 s{s}, s{base}, s{off_s}")
            a(f"s_addc_u32 s{s+1}, s{base+1}, 0")
        elif off_imm:
            a(f"s_add_u32 s{s}, s{base}, {off_imm}")
            a(f"s_addc_u32 s{s+1}, s{base+1}, 0")
        else:
            a(f"s_mov_b32 s{s}, s{base}")
            a(f"s_mov_b32 s{s+1}, s{base+1}")
        if size_s is not None:
            a(f"s_mov_b32 s{s+2}, s{size_s}")
        else:
            a(f"s_mov_b32 s{s+2}, {size}")
        a(f"s_mov_b32 s{s+3}, 0x00020000")

    def xrow_reduce(v, t, op):
        a(f"v_mov_b32 v{t}, v{v}")
        a("s_nop 1")
        a(f"v_permlane16_swap_b32 v{v}, v{t}")
        a("s_nop 1")
        a(f"{op} v{v}, v{v}, v{t}")
        a(f"v_mov_b32 v{t}, v{v}")
        a("s_nop 1")
        a(f"v_permlane32_swap_b32 v{v}, v{t}")
        a("s_nop 1")
        a(f"{op} v{v}, v{v}, v{t}")

    def row16_reduce(regs, op="v_add_f32"):
        for ctl in ("quad_perm:[1,0,3,2]", "quad_perm:[2,3,0,1]", "row_half_mirror", "row_mirror"):
            a("s_nop 1")
            for r in regs:
                a(f"{op}_dpp v{r}, v{r}, v{r} {ctl} row_mask:0xf bank_mask:0xf")

    def transposed_reduce(regs):
        n = len(regs) // 2
        a("s_nop 1")
        for i in range(n):
            a(f"v_permlane32_swap_b32 v{regs[i]}, v{regs[i+n]}")
        a("s_nop 1")
        for i in range(n):
            a(f"v_add_f32 v{regs[i]}, v{regs[i]}, v{regs[i+n]}")
        regs = regs[:n]
        n = n // 2
        a("s_nop 1")
        for i in range(n):
            a(f"v_permlane16_swap_b32 v{regs[i]}, v{regs[i+n]}")
        a("s_nop 1")
        for i in range(n):
            a(f"v_add_f32 v{regs[i]}, v{regs[i]}, v{regs[i+n]}")
        return regs[:n]

    def bf16_round(dst, src):
        a(f"v_cvt_pk_bf16_f32 v{dst}, v{src}, v{src}")
        a(f"v_lshlrev_b32 v{dst}, 16, v{dst}")

    def poll(loads, tagregs, tmp, lbl, sleep):
        L = a.label(lbl)
        Lok = a.label(lbl + "ok")
        a(f"s_mov_b32 s{sSpin}, 0")
        a(f"{L}:")
        loads()
        a("s_waitcnt vmcnt(0)")
        first = True
        for r in tagregs:
            if first:
                a(f"v_xor_b32 v{tmp}, s{sTag}, v{r}")
                first = False
            else:
                a(f"v_xor_b32 v{tmp+1}, s{sTag}, v{r}")
                a(f"v_or_b32 v{tmp}, v{tmp}, v{tmp+1}")
        a(f"v_cmp_ne_u32 vcc, 0, v{tmp}")
        a("s_nop 4")
        a(f"s_cbranch_vccz {Lok}")
        a(f"s_add_u32 s{sSpin}, s{sSpin}, 1")
        a(f"s_cmp_lt_u32 s{sSpin}, {MAXSPIN}")
        if sleep:
            a(f"s_sleep {sleep}")
        a(f"s_cbranch_scc1 {L}")
        a(f"{Lok}:")

    def poll_masked(nk, load_k, tags_k, tmp, lbl, sleep):
        L = a.label(lbl)
        Lok = a.label(lbl + "ok")
        sPend = sPM
        a(f"s_mov_b32 s{sSpin}, 0")
        a(f"s_mov_b32 s{sPend}, {(1 << nk) - 1}")
        a(f"{L}:")
        for k in range(nk):
            sk = a.label(lbl + "s")
            a(f"s_bitcmp1_b32 s{sPend}, {k}")
            a(f"s_cbranch_scc0 {sk}")
            load_k(k)
            a(f"{sk}:")
        a("s_waitcnt vmcnt(0)")
        for k in range(nk):
            tg = tags_k(k)
            if len(tg) == 1:
                a(f"v_cmp_ne_u32 vcc, s{sTag}, v{tg[0]}")
            else:
                a(f"v_xor_b32 v{tmp}, s{sTag}, v{tg[0]}")
                for r in tg[1:]:
                    a(f"v_xor_b32 v{tmp+1}, s{sTag}, v{r}")
                    a(f"v_or_b32 v{tmp}, v{tmp}, v{tmp+1}")
                a(f"v_cmp_ne_u32 vcc, 0, v{tmp}")
            a("s_nop 0")
            a("s_cmp_eq_u64 vcc, 0")
            a(f"s_cselect_b32 s{sPend+1}, {hex((~(1 << k)) & 0xffffffff)}, -1")
            a(f"s_and_b32 s{sPend}, s{sPend}, s{sPend+1}")
        a(f"s_cmp_eq_u32 s{sPend}, 0")
        a(f"s_cbranch_scc1 {Lok}")
        a(f"s_add_u32 s{sSpin}, s{sSpin}, 1")
        a(f"s_cmp_lt_u32 s{sSpin}, {MAXSPIN}")
        if sleep:
            a(f"s_sleep {sleep}")
        a(f"s_cbranch_scc1 {L}")
        a(f"{Lok}:")

    def publish48(acc, ws_off, t, nprod, sprod):
        q = vW
        for g in range(3):
            for i in range(3):
                k = 3 * g + i
                if k < 8:
                    a(f"v_mov_b32 v{q+4*g+i}, v{acc+k}")
                else:
                    a(f"v_mov_b32 v{q+4*g+i}, 0")
            a(f"v_mov_b32 v{q+4*g+3}, s{sTag}")
        a(f"s_mul_i32 s{sT}, s{sprod}, 2688")
        a(f"s_add_u32 s{sT}, s{sT}, {ws_off}")
        srd(sR0, sWs, off_s=sT, size=2688)
        a(f"v_lshlrev_b32 v{t}, 4, v{vLane}")
        a(f"s_mov_b32 s{sSave}, -1")
        a(f"s_mov_b32 s{sSave+1}, 0x00ffffff")
        a(f"s_mov_b64 exec, s[{sSave}:{sSave+1}]")
        for g in range(3):
            a(f"buffer_store_dwordx4 v[{q+4*g}:{q+4*g+3}], v{t}, s[{sR0}:{sR0+3}], 0 offen offset:{896*g} sc1")
        a("s_mov_b64 exec, -1")

    ntile0 = (G0 + 1) // 2
    T = 2 * (G0 - G)
    n0 = T
    tau0 = n0 // 2
    F = (G + 1) // 2
    NSTAT = max(tau0 + F + 1, ntile0)
    S0 = 24 * ntile0 + (NSTAT - ntile0) * 8 * NS
    if not dyn:
        NPRE = (TILES - S0 + 7) // 8 + 16
    if not dyn:
        NPM = NPRE
    NPM = min(NPM, NPRE)
    CT0 = S0 + 8 * NPRE
    CT0M = S0 + 8 * NPM + 7 * (NPRE - NPM)

    a(f"{KN}_kernel:")
    a("s_cmp_ge_u32 s2, 256")
    a("s_cbranch_scc1 L_end")
    if stamps:
        for i in range(22):
            a(f"s_mov_b32 s{sSt+i}, 0")
    stamp(0)
    a("s_load_dwordx16 s[4:19], s[0:1], 0")
    a("s_load_dwordx8 s[20:27], s[0:1], 64")
    a(f"v_and_b32 v{vLane}, 63, v0")
    a(f"v_lshrrev_b32 v{vT}, 6, v0")
    a(f"s_bfe_u32 s{sKap}, s2, 0x30003")
    a(f"s_lshr_b32 s{sC}, s2, 6")
    a(f"s_lshl_b32 s{sC}, s{sC}, 3")
    a(f"s_and_b32 s{sJ}, s2, 7")
    a(f"s_add_u32 s{sC}, s{sC}, s{sJ}")
    a(f"v_readfirstlane_b32 s{sWave}, v{vT}")
    a(f"s_cmp_eq_u32 s{sWave}, 0")
    a("s_cbranch_scc1 L_helper1")
    if codepf:
        a(f"s_cmp_eq_u32 s{sWave}, 3")
        a("s_cbranch_scc0 L_nocpf")
        a(f"s_getpc_b64 s[{sR0}:{sR0+1}]")
        a("L_pcref:")
        a(f"s_sub_u32 s{sR0}, s{sR0}, L_pcref-{KN}_kernel")
        a(f"s_subb_u32 s{sR0+1}, s{sR0+1}, 0")
        a(f"v_lshlrev_b32 v{vT+3}, 7, v{vLane}")
        for k in range(4):
            a(f"v_add_u32 v{vT+4}, {k*8192}, v{vT+3}")
            a(f"v_min_u32 v{vT+4}, L_end-{KN}_kernel, v{vT+4}")
            a(f"global_load_dword v{vT+5}, v{vT+4}, s[{sR0}:{sR0+1}]")
        a("L_nocpf:")
    a(f"v_and_b32 v{vT+1}, 15, v{vLane}")
    a(f"v_lshrrev_b32 v{vT+2}, 4, v{vLane}")
    a(f"v_lshlrev_b32 v{vKoff}, 9, v{vT+1}")
    a(f"v_lshl_add_u32 v{vKoff}, v{vT+2}, 4, v{vKoff}")
    a(f"v_lshlrev_b32 v{vVoff}, 11, v{vT+2}")
    a(f"v_lshl_add_u32 v{vVoff}, v{vT+1}, 4, v{vVoff}")
    a(f"s_lshl_b32 s{sT}, s{sKap}, 25")
    a(f"s_lshr_b32 s{sT+1}, s2, 6")
    a(f"s_lshl_b32 s{sT+1}, s{sT+1}, 23")
    a(f"s_add_u32 s{sT}, s{sT}, s{sT+1}")
    a(f"s_mul_i32 s{sA1}, s{sJ}, 3")
    a(f"s_add_u32 s{sA1}, s{sA1}, s{sWave}")
    a(f"s_sub_u32 s{sA1}, s{sA1}, 1")
    a(f"s_lshl_b32 s{sA1}, s{sA1}, 13")
    a(f"s_mov_b32 s{sQ}, s{sA1}")
    a("s_waitcnt lgkmcnt(0)")
    a(f"s_load_dword s{sE}, s[{sWs}:{sWs+1}], {WS_EPOCH}")
    srd(sK, sKp, off_s=sT, size=LIMIT)
    srd(sV, sVp, off_s=sT, size=LIMIT)
    if a0mode != "none" and pre_groups == 0:
        a("s_barrier")

    koff = lambda j: j * 64
    voff = lambda j: (j >> 1) * 512 + (j & 1) * 256

    def sreg(slot, j):
        if 'vslots' in exp:
            r = 96 + slot * 32 + j * 4
            return f"v[{r}:{r+3}]"
        if slot < 8:
            r = slot * 32 + j * 4
            return f"a[{r}:{r+3}]"
        r = 96 + (slot - 8) * 32 + j * 4
        return f"v[{r}:{r+3}]"

    def issue_group(n_is_k, slot, soff):
        for j in range(8):
            if n_is_k:
                a(f"buffer_load_dwordx4 {sreg(slot,j)}, v{vKoff}, s[{sK}:{sK+3}], s{soff} offen offset:{koff(j)} {kflags}")
            else:
                a(f"buffer_load_dwordx4 {sreg(slot,j)}, v{vVoff}, s[{sV}:{sV+3}], s{soff} offen offset:{voff(j)} {vflags}")

    for n in range(G0):
        if n % 2 == 0 and n > 0:
            a(f"s_add_u32 s{sQ}, s{sQ}, {24*8192}")
        issue_group(n % 2 == 0, n, sQ)
        if pre_groups and n == pre_groups - 1:
            a("s_barrier")
        if pfi is not None and n >= pfi and n < G0 - 1:
            a(f"s_waitcnt vmcnt({8*pfi})")
    stamp(1)
    a(f"v_and_b32 v{vT+6}, 1, v{vLane}")
    a(f"v_cmp_eq_u32 vcc, 1, v{vT+6}")
    a(f"v_mov_b32 v{vT+4}, 0xffff")
    a(f"v_mov_b32 v{vT+5}, 0xffff0000")
    a(f"v_cndmask_b32 v{vT+4}, v{vT+4}, v{vT+5}, vcc")
    a(f"v_bfe_u32 v{vT+6}, v{vLane}, 1, 2")
    for j in range(4):
        a(f"v_cmp_eq_u32 vcc, {j}, v{vT+6}")
        a("s_nop 1")
        a(f"v_cndmask_b32 v{vMask+j}, 0, v{vT+4}, vcc")
    a(f"v_mov_b32 v{vM}, {hex(f2u(-1e30))}")
    a(f"v_mov_b32 v{vL}, 0")
    for i in range(8):
        a(f"v_mov_b32 v{vO+i}, 0")
    smask = sum(1 << w for w in streamers)
    a(f"s_lshr_b32 s{sT}, {smask}, s{sWave}")
    a(f"s_and_b32 s{sPM}, s{sT}, 1")
    a(f"s_mov_b32 s{sPM+1}, 0")
    a(f"s_lshl_b32 s{sT}, 1, s{sWave}")
    a(f"s_sub_u32 s{sT}, s{sT}, 1")
    a(f"s_and_b32 s{sT}, s{sT}, {smask}")
    a(f"s_bcnt1_i32_b32 s{sT}, s{sT}")
    a(f"s_mul_i32 s{sA2}, s{sJ}, {NS}")
    a(f"s_add_u32 s{sA2}, s{sA2}, s{sT}")
    a(f"s_add_u32 s{sA2}, s{sA2}, {24*ntile0}")
    a(f"s_lshl_b32 s{sA2}, s{sA2}, 13")
    a(f"s_cmp_eq_u32 s{sPM}, 1")
    a(f"s_cselect_b32 s{sA2}, s{sA2}, {LIMIT}")
    a(f"v_mov_b32 v{vHd}, {L_HEAD}")
    a(f"v_mov_b32 v{vOne}, 1")
    a(f"s_mov_b32 s{sC1}, {hex(f2u(SC))}")
    a("s_waitcnt lgkmcnt(0)")
    a(f"s_mul_i32 s{sTag}, s{sE}, 0x9E3779B1")
    a(f"s_add_u32 s{sTag}, s{sTag}, 0x7F4A7C15")
    a("s_branch L_barB")

    a("L_helper1:")
    if prio:
        a("s_setprio 3")
    t = vT
    a(f"s_lshr_b32 s{sT+5}, s2, 3")
    a(f"s_lshl_b32 s{sT+5}, s{sT+5}, 2")
    a(f"s_add_u32 s{sT+5}, s{sT+5}, s{sJ}")
    a(f"s_lshr_b32 s{sT}, s{sT+5}, 1")
    a(f"s_lshl_b32 s{sT}, s{sT}, 7")
    a(f"s_lshl_b32 s{sT+3}, s{sT+5}, 9")
    a(f"s_add_u32 s{sT+3}, s{sT+3}, {WS_QG}")
    a(f"s_and_b32 s{sT+4}, s{sT+5}, 1")
    a(f"s_mov_b32 s{sT+1}, 8192")
    a(f"s_sub_u32 s{sT+2}, {448*8192}, s{sT}")
    a(f"s_cmp_lt_u32 s{sJ}, {0 if 'nounit' in exp else 4}")
    a(f"s_cselect_b32 s{sT+2}, s{sT+2}, 0")
    a(f"v_lshrrev_b32 v{t}, 3, v{vLane}")
    a(f"v_mul_lo_u32 v{t}, v{t}, s{sT+1}")
    a(f"v_and_b32 v{t+1}, 7, v{vLane}")
    a(f"v_lshl_add_u32 v{t}, v{t+1}, 4, v{t}")
    a(f"v_lshlrev_b32 v{t+2}, 1, v{vLane}")
    a(f"s_mul_i32 s{sQ}, s{sT+4}, 224")
    a(f"s_mul_i32 s{sQ}, s{sQ}, s{sT+1}")
    a(f"s_lshl_b32 s{sQ+1}, s{sT+1}, 3")
    a("s_waitcnt lgkmcnt(0)")
    a(f"s_load_dword s{sE}, s[{sWs}:{sWs+1}], {WS_EPOCH}")
    srd(sR1, sWq, off_s=sT, size_s=sT + 2)
    srd(sR0, sX, size=896)
    for k in range(7):
        a(f"buffer_load_ushort v{vX+k}, v{t+2}, s[{sR0}:{sR0+3}], 0 offen offset:{128*k}")
    for i in range(28):
        a(f"buffer_load_dwordx4 v[{vW+4*i}:{vW+4*i+3}], v{t}, s[{sR1}:{sR1+3}], s{sQ} offen {wflags}")
        if i < 27:
            a(f"s_add_u32 s{sQ}, s{sQ}, s{sQ+1}")
    if a0mode == "issue":
        a("s_barrier")
    stamp(1)
    a("s_waitcnt lgkmcnt(0)")
    a(f"s_mul_i32 s{sTag}, s{sE}, 0x9E3779B1")
    a(f"s_add_u32 s{sTag}, s{sTag}, 0x7F4A7C15")
    a(f"s_lshr_b32 s{sE}, s2, 3")
    a(f"s_cmp_lt_u32 s{sE}, {28 if NPM < NPRE else 0}")
    a(f"s_cselect_b32 s{sQ+2}, 7, 8")
    a(f"s_mov_b32 s{sQ+4}, {CT0}")
    a(f"s_cselect_b32 s{sQ+4}, {CT0M}, s{sQ+4}")
    a(f"s_cselect_b32 s{sQ+5}, 1, 0")
    a(f"s_cmp_gt_u32 s{sJ}, 4")
    a(f"s_cselect_b32 s{sQ+3}, s{sQ+5}, 0")
    a(f"s_sub_u32 s{sQ+3}, s{sJ}, s{sQ+3}")
    a(f"s_cmp_eq_u32 s{sJ}, 4")
    a(f"s_cselect_b32 s{sQ+5}, s{sQ+5}, 0")
    a(f"s_cmp_eq_u32 s{sQ+5}, 1")
    a(f"s_mov_b32 s{sA1}, {NPRE}")
    a(f"s_cselect_b32 s{sA1}, {NPM}, s{sA1}")
    a(f"s_cmp_eq_u32 s{sJ}, 0")
    a("s_cbranch_scc0 L_noctinit")
    a(f"s_lshr_b32 s{sE}, s2, 3")
    a(f"s_lshl_b32 s{sE}, s{sE}, 8")
    a(f"s_add_u32 s{sE}, s{sE}, {WS_CT}")
    srd(sCT, sWs, off_s=sE, size=8)
    a(f"v_mov_b32 v{vA}, s{sQ+4}")
    a(f"v_mov_b32 v{vA+1}, s{sTag}")
    a(f"v_mov_b32 v{vZ}, 0")
    a("s_mov_b64 exec, 1")
    a(f"buffer_store_dwordx2 v[{vA}:{vA+1}], v{vZ}, s[{sCT}:{sCT+3}], 0 offen sc1")
    a("s_mov_b64 exec, -1")
    a("s_waitcnt vmcnt(29)")
    a("s_branch L_ctdone")
    a("L_noctinit:")
    a("s_waitcnt vmcnt(28)")
    a("L_ctdone:")
    a(f"v_lshlrev_b32 v{t+3}, 4, v{vLane}")
    a(f"v_mov_b32 v{vP}, -1")
    a(f"v_mov_b32 v{vP+1}, -1")
    a(f"v_mov_b32 v{vP+2}, -1")
    a(f"v_mov_b32 v{vP+3}, -1")
    for i in range(4):
        a(f"ds_write_b128 v{t+3}, v[{vP}:{vP+3}] offset:{L_QUE + 1024*i}")
    a(f"v_lshlrev_b32 v{t+3}, 2, v{vLane}")
    a(f"ds_write_b32 v{t+3}, v{vP} offset:{L_QUE + 4096}")
    a(f"ds_write_b32 v{t+3}, v{vP} offset:{L_QUE + 4096 + 256}")
    a(f"s_add_u32 s{sE}, s{sJ}, {S0}")
    a(f"s_add_u32 s{sQ+3}, s{sQ+3}, {S0 + 8*NPM}")
    for blk in range((NPRE + 63) // 64):
        a(f"v_add_u32 v{vP+4}, {blk*64}, v{vLane}")
        a(f"v_lshlrev_b32 v{t+4}, 3, v{vP+4}")
        a(f"v_add_u32 v{t+4}, s{sE}, v{t+4}")
        a(f"v_subrev_u32 v{vP+5}, {NPM}, v{vP+4}")
        a(f"v_mul_lo_u32 v{vP+5}, v{vP+5}, s{sQ+2}")
        a(f"v_add_u32 v{vP+5}, s{sQ+3}, v{vP+5}")
        a(f"v_cmp_gt_u32 vcc, {NPM}, v{vP+4}")
        a("s_nop 1")
        a(f"v_cndmask_b32 v{t+4}, v{vP+5}, v{t+4}, vcc")
        a(f"v_cmp_gt_u32 vcc, s{sA1}, v{vP+4}")
        a("s_nop 1")
        a(f"v_cndmask_b32 v{t+4}, v{vP}, v{t+4}, vcc")
        a(f"ds_write_b32 v{t+3}, v{t+4} offset:{L_QUE + 256*blk}")
    a(f"v_mov_b32 v{t+4}, 0")
    a(f"v_mov_b32 v{t+3}, {L_HEAD}")
    a(f"ds_write_b32 v{t+3}, v{t+4}")
    if 'noq' in exp:
        a(f"v_mov_b32 v{vM}, {hex(f2u(-1e30))}")
        a(f"v_mov_b32 v{vL}, 0")
        for i in range(8):
            a(f"v_mov_b32 v{vO+i}, 0")
        a("s_waitcnt vmcnt(0) lgkmcnt(0)")
        a("s_setprio 0")
        a("s_branch L_barB")
    for k in range(7):
        a(f"v_lshlrev_b32 v{vX+k}, 16, v{vX+k}")
    u = vQ
    a(f"v_add_f32 v{u}, v{vX}, v{vX+1}")
    for k in range(2, 7):
        a(f"v_add_f32 v{u}, v{u}, v{vX+k}")
    row16_reduce([u])
    a("s_nop 1")
    xrow_reduce(u, u + 1, "v_add_f32")
    a(f"v_mul_f32 v{u}, {hex(f2u(1.0/448))}, v{u}")
    a(f"v_sub_f32 v{u+2}, v{vX}, v{u}")
    a(f"v_mul_f32 v{u+3}, v{u+2}, v{u+2}")
    for k in range(1, 7):
        a(f"v_sub_f32 v{u+2}, v{vX+k}, v{u}")
        a(f"v_fmac_f32 v{u+3}, v{u+2}, v{u+2}")
    row16_reduce([u + 3])
    a("s_nop 1")
    xrow_reduce(u + 3, u + 1, "v_add_f32")
    a(f"v_mul_f32 v{u+3}, {hex(f2u(1.0/448))}, v{u+3}")
    bf16_round(u + 3, u + 3)
    a(f"v_add_f32 v{u+3}, {hex(f2u(1e-5))}, v{u+3}")
    bf16_round(u + 3, u + 3)
    a(f"v_sqrt_f32 v{u+3}, v{u+3}")
    a("s_nop 0")
    bf16_round(u + 3, u + 3)
    bf16_round(u, u)
    a(f"v_rcp_f32 v{u+4}, v{u+3}")
    a("s_nop 0")
    for k in range(7):
        d = vX + k
        a(f"v_sub_f32 v{d}, v{d}, v{u}")
        bf16_round(d, d)
        a(f"v_mul_f32 v{u+5}, v{d}, v{u+4}")
        a(f"v_fma_f32 v{d}, -v{u+5}, v{u+3}, v{d}")
        a(f"v_fma_f32 v{d}, v{d}, v{u+4}, v{u+5}")
        bf16_round(d, d)
    a(f"v_lshlrev_b32 v{t+3}, 2, v{vLane}")
    for k in range(7):
        a(f"ds_write_b32 v{t+3}, v{vX+k} offset:{L_XN + 256*k}")
    a(f"v_lshrrev_b32 v{t+3}, 3, v{vLane}")
    a(f"v_lshlrev_b32 v{t+3}, 2, v{t+3}")
    a(f"s_mul_i32 s{sQ}, s{sT+4}, 896")
    a(f"v_add_u32 v{t+3}, s{sQ}, v{t+3}")
    a("s_waitcnt lgkmcnt(0)")
    xr = vQ + 4
    for i in range(28):
        a(f"ds_read_b32 v{xr+i}, v{t+3} offset:{L_XN + 32*i}")
    acc = vP
    for i in range(8):
        a(f"v_mov_b32 v{acc+i}, 0")
    a("s_waitcnt lgkmcnt(0)")
    for i in range(28):
        a(f"s_waitcnt vmcnt({27-i})")
        a(f"v_lshrrev_b32 v{t+4}, 16, v{xr+i}")
        for d in range(4):
            w = vW + 4 * i + d
            a(f"v_dot2_f32_bf16 v{acc+2*d}, v{w}, v{t+4}, v{acc+2*d}")
            a(f"v_dot2_f32_bf16 v{acc+2*d+1}, v{w}, v{xr+i}, v{acc+2*d+1}")
    if a0mode == "landed":
        a("s_barrier")
    rem = transposed_reduce([acc + i for i in range(8)])
    a("s_nop 1")
    for r in rem:
        a(f"v_add_f32_dpp v{r}, v{r}, v{r} row_ror:8 row_mask:0xf bank_mask:0xf")
    a(f"v_mov_b32 v{acc+4}, v{rem[0]}")
    a(f"v_mov_b32 v{acc+5}, s{sTag}")
    a(f"v_mov_b32 v{acc+6}, v{rem[1]}")
    a(f"v_mov_b32 v{acc+7}, s{sTag}")
    a(f"v_and_b32 v{t+3}, 7, v{vLane}")
    a(f"v_lshlrev_b32 v{t+3}, 6, v{t+3}")
    a(f"v_lshrrev_b32 v{t+4}, 4, v{vLane}")
    a(f"v_lshl_add_u32 v{t+3}, v{t+4}, 4, v{t+3}")
    a(f"s_cmp_lt_u32 s{sJ}, 4")
    a("s_cbranch_scc0 L_nopub")
    srd(sR0, sWs, off_s=sT + 3, size=512)
    a(f"s_mov_b32 s{sSave}, 0x00ff00ff")
    a(f"s_mov_b32 s{sSave+1}, 0x00ff00ff")
    a(f"s_mov_b64 exec, s[{sSave}:{sSave+1}]")
    a(f"buffer_store_dwordx4 v[{acc+4}:{acc+7}], v{t+3}, s[{sR0}:{sR0+3}], 0 offen sc1")
    a("s_mov_b64 exec, -1")
    a("L_nopub:")
    stamp(2)
    a(f"s_lshl_b32 s{sT}, s{sKap}, 13")
    a(f"s_add_u32 s{sT}, s{sT}, {WS_QG}")
    srd(sR0, sWs, off_s=sT, size=8192)
    a(f"v_lshlrev_b32 v{t}, 4, v{vLane}")
    a(f"s_mov_b32 s{sT+1}, 4096")
    qg = vW

    def qload(b):
        so = "0" if b < 4 else f"s{sT+1}"
        a(f"buffer_load_dwordx4 v[{qg+4*b}:{qg+4*b+3}], v{t}, s[{sR0}:{sR0+3}], {so} offen offset:{(b%4)*1024} sc1")
    if qmask:
        poll_masked(8, qload, lambda b: [qg + 4 * b + 1, qg + 4 * b + 3], t + 2, "L_pq", sleep_q)
    else:
        poll(lambda: [qload(b) for b in range(8)], [qg + 4 * b + k for b in range(8) for k in (1, 3)], t + 2, "L_pq", sleep_q)
    for b in range(8):
        a(f"v_permlane32_swap_b32 v{qg+4*b}, v{qg+4*b+2}")
    a("s_nop 1")
    for b in range(8):
        a(f"v_add_f32 v{qg+4*b}, v{qg+4*b}, v{qg+4*b+2}")
    for b in range(8):
        a(f"v_cvt_pk_bf16_f32 v{qg+4*b}, v{qg+4*b}, v{qg+4*b}")
    a(f"v_and_b32 v{t}, 31, v{vLane}")
    a(f"v_lshlrev_b32 v{t}, 2, v{t}")
    a(f"v_lshrrev_b32 v{t+1}, 5, v{vLane}")
    a(f"v_lshl_add_u32 v{t}, v{t+1}, 1, v{t}")
    for b in range(8):
        a(f"ds_write_b16 v{t}, v{qg+4*b} offset:{L_Q + 128*b}")
    a(f"v_mov_b32 v{vM}, {hex(f2u(-1e30))}")
    a(f"v_mov_b32 v{vL}, 0")
    for i in range(8):
        a(f"v_mov_b32 v{vO+i}, 0")
    a("s_waitcnt lgkmcnt(0)")
    if prio:
        a("s_setprio 0")
    a("L_barB:")
    a("s_barrier")
    stamp(3)
    a(f"s_lshr_b32 s{sCB}, s2, 3")
    a(f"s_cmp_eq_u32 s{sJ}, 5")
    a(f"s_cselect_b32 s{sCB}, s{sCB}, 255")
    a(f"s_cmp_eq_u32 s{sWave}, 0")
    a("s_cbranch_scc1 L_helper2")
    t = vT
    a(f"v_bfe_u32 v{t}, v{vLane}, 3, 1")
    a(f"v_lshlrev_b32 v{t}, 9, v{t}")
    a(f"v_lshrrev_b32 v{t+1}, 4, v{vLane}")
    a(f"v_lshl_add_u32 v{t}, v{t+1}, 4, v{t}")
    for j in range(8):
        a(f"ds_read_b128 v[{vQ+4*j}:{vQ+4*j+3}], v{t} offset:{L_Q + 64*j}")
    a("s_waitcnt lgkmcnt(0)")

    def qk(slot):
        for j in range(8):
            c = "0" if j == 0 else f"v[{vS}:{vS+3}]"
            a(f"v_mfma_f32_16x16x32_bf16 v[{vS}:{vS+3}], {sreg(slot,j)}, v[{vQ+4*j}:{vQ+4*j+3}], {c}")

    def softmax():
        t = vT
        if 'nosm' in exp:
            return
        a(f"v_cvt_pk_bf16_f32 v{t}, v{vS}, v{vS+1}")
        a(f"v_cvt_pk_bf16_f32 v{t+1}, v{vS+2}, v{vS+3}")
        a(f"v_lshlrev_b32 v{vS}, 16, v{t}")
        a(f"v_and_b32 v{vS+1}, 0xffff0000, v{t}")
        a(f"v_lshlrev_b32 v{vS+2}, 16, v{t+1}")
        a(f"v_and_b32 v{vS+3}, 0xffff0000, v{t+1}")
        a(f"v_max3_f32 v{t}, v{vS}, v{vS+1}, v{vS+2}")
        a(f"v_max_f32 v{t}, v{t}, v{vS+3}")
        xrow_reduce(t, t + 1, "v_max_f32")
        a(f"v_mul_f32 v{t}, s{sC1}, v{t}")
        a(f"v_max_f32 v{t}, v{t}, v{vM}")
        a(f"v_sub_f32 v{t+1}, v{vM}, v{t}")
        a(f"v_exp_f32 v{t+1}, v{t+1}")
        a(f"v_mov_b32 v{vM}, v{t}")
        for i in range(4):
            a(f"v_fma_f32 v{vS+i}, v{vS+i}, s{sC1}, -v{t}")
        for i in range(4):
            a(f"v_exp_f32 v{vS+i}, v{vS+i}")
        for i in range(8):
            a(f"v_mul_f32 v{vO+i}, v{vO+i}, v{t+1}")
        a(f"v_add_f32 v{t+2}, v{vS}, v{vS+1}")
        a(f"v_add_f32 v{t+3}, v{vS+2}, v{vS+3}")
        a(f"v_add_f32 v{t+2}, v{t+2}, v{t+3}")
        a(f"v_fma_f32 v{vL}, v{vL}, v{t+1}, v{t+2}")
        for i in range(4):
            a(f"v_cvt_pk_bf16_f32 v{t+2+i}, v{vS+i}, v{vS+i}")
        for i in range(4):
            for j in range(4):
                a(f"v_and_b32 v{vP+4*i+j}, v{t+2+i}, v{vMask+j}")

    def pv(slot):
        for i in range(4):
            for h in range(2):
                a(f"v_mfma_f32_16x16x32_bf16 v[{vO+4*h}:{vO+4*h+3}], {sreg(slot,i*2+h)}, v[{vP+4*i}:{vP+4*i+3}], v[{vO+4*h}:{vO+4*h+3}]")

    def static_tile(dst, tau):
        if tau < ntile0:
            a(f"s_add_u32 s{dst}, s{sA1}, {24*tau*8192}")
        else:
            a(f"s_add_u32 s{dst}, s{sA2}, {(tau-ntile0)*8*NS*8192}")

    slot_of_group = {n: n for n in range(G0)}
    issued = G0
    free = []
    treg = lambda tau: sQ + (tau % 8)
    got = set()

    def get_tile(tau):
        if tau not in got:
            got.add(tau)
            static_tile(treg(tau), tau)
    nissue = T - (G0 - G)
    issue_steps = set(2 * k + 1 for k in range(nissue))
    for n in range(n0):
        tau = n >> 1
        if n % 2 == 0 and tau >= ntile0:
            a(f"s_cmp_ge_u32 s{treg(tau)}, {LIMIT}")
            a("s_cbranch_scc1 L_loopend")
        a(f"s_waitcnt vmcnt({min(63, (issued-n-1)*8)})")
        if n % 2 == 0:
            qk(slot_of_group[n])
        else:
            a("s_nop 1")
            pv(slot_of_group[n])
        free.append(slot_of_group[n])
        if n in issue_steps:
            get_tile(issued >> 1)
            sl = free.pop(0)
            slot_of_group[issued] = sl
            issue_group(issued % 2 == 0, sl, treg(issued >> 1))
            issued += 1
        if n % 2 == 0:
            a("s_nop 7")
            softmax()
    assert issued == n0 + G
    sOf = sQ
    for i in range(F):
        get_tile(tau0 + i)
    for i in range(F):
        a(f"s_mov_b32 s{sT+i}, s{treg(tau0+i)}")
    for i in range(F):
        a(f"s_mov_b32 s{sOf+i}, s{sT+i}")
    static_tile(sT, tau0 + F)
    a(f"s_lshr_b32 s{sT}, s{sT}, 13")
    a(f"v_mov_b32 v{vE}, s{sT}")
    stamp(4)
    period_tiles = 1 if G == 2 else (G // 2 if G % 2 == 0 else G)
    slot_of = lambda n: slot_of_group[n0 + ((n - n0) % G)]
    W = 8 * G - 1
    empties = []

    def decode(idx):
        a("s_waitcnt lgkmcnt(0)")
        a(f"v_readfirstlane_b32 s{sT}, v{vE}")
        a("s_nop 0")
        a(f"s_cmp_eq_u32 s{sT}, -1")
        a(f"s_cbranch_scc1 L_empty{idx}")
        a(f"L_entryok{idx}:")
        a(f"s_min_u32 s{sT}, s{sT}, {TILES}")
        a(f"s_lshl_b32 s{sOf+F}, s{sT}, 13")
        empties.append(idx)

    def take_ticket():
        a(f"s_mov_b64 exec, s[{sPM}:{sPM+1}]")
        a(f"ds_add_rtn_u32 v{vTk}, v{vHd}, v{vOne}")
        a("s_mov_b64 exec, -1")

    def read_entry():
        a(f"s_mov_b64 exec, s[{sPM}:{sPM+1}]")
        a(f"v_lshlrev_b32 v{vTk}, 2, v{vTk}")
        a(f"ds_read_b32 v{vE}, v{vTk} offset:{L_QUE}")
        a(f"v_mov_b32 v{vAd}, v{vTk}")
        a("s_mov_b64 exec, -1")

    def ld(isk, slot, j, soff):
        if isk:
            a(f"buffer_load_dwordx4 {sreg(slot,j)}, v{vKoff}, s[{sK}:{sK+3}], s{soff} offen offset:{koff(j)} {kflags}")
        else:
            a(f"buffer_load_dwordx4 {sreg(slot,j)}, v{vVoff}, s[{sV}:{sV+3}], s{soff} offen offset:{voff(j)} {vflags}")

    a("L_loop:")
    for tl in range(period_tiles):
        n = n0 + 2 * tl
        a(f"s_cmp_ge_u32 s{sOf}, {LIMIT}")
        a("s_cbranch_scc1 L_loopend")
        if G % 2 == 0:
            decode(tl)
            take_ticket()
        else:
            take_ticket()
        m = n + G
        rel = (m >> 1) - (n >> 1)
        sl = slot_of(n)
        for j in range(8):
            a(f"s_waitcnt vmcnt({W})")
            c = "0" if j == 0 else f"v[{vS}:{vS+3}]"
            a(f"v_mfma_f32_16x16x32_bf16 v[{vS}:{vS+3}], {sreg(sl,j)}, v[{vQ+4*j}:{vQ+4*j+3}], {c}")
            ld(m % 2 == 0, sl, j, sOf + rel)
        a("s_nop 7")
        softmax()
        n += 1
        m = n + G
        rel = (m >> 1) - (n >> 1)
        sl = slot_of(n)
        if G % 2 == 0:
            a("s_waitcnt lgkmcnt(0)")
            read_entry()
        else:
            decode(tl)
            read_entry()
        for j in range(8):
            i, h = j >> 1, j & 1
            a(f"s_waitcnt vmcnt({W})")
            a(f"v_mfma_f32_16x16x32_bf16 v[{vO+4*h}:{vO+4*h+3}], {sreg(sl,j)}, v[{vP+4*i}:{vP+4*i+3}], v[{vO+4*h}:{vO+4*h+3}]")
            ld(m % 2 == 0, sl, j, sOf + rel)
        for i in range(F):
            a(f"s_mov_b32 s{sOf+i}, s{sOf+i+1}")
    a("s_branch L_loop")
    for idx in empties:
        a(f"L_empty{idx}:")
        if stamps:
            a(f"s_add_u32 s{sSt+4}, s{sSt+4}, 1")
        a(f"s_mov_b32 s{sSpin}, 0")
        a(f"L_emptyl{idx}:")
        a("s_sleep 1")
        a(f"ds_read_b32 v{vE}, v{vAd} offset:{L_QUE}")
        a("s_waitcnt lgkmcnt(0)")
        a(f"v_readfirstlane_b32 s{sT}, v{vE}")
        a("s_nop 0")
        a(f"s_cmp_eq_u32 s{sT}, -1")
        a(f"s_cbranch_scc0 L_entryok{idx}")
        if stamps:
            a(f"s_add_u32 s{sSt+5}, s{sSt+5}, 1")
        a(f"s_add_u32 s{sSpin}, s{sSpin}, 1")
        a(f"s_cmp_lt_u32 s{sSpin}, {MAXSPIN*16}")
        a(f"s_cbranch_scc1 L_emptyl{idx}")
        a(f"s_mov_b32 s{sT}, {TILES}")
        a(f"s_branch L_entryok{idx}")
    a("L_loopend:")
    a("s_waitcnt vmcnt(0)")
    a("s_branch L_combine")

    a("L_helper2:")
    t = vT
    if 'nomlp' in exp:
        a("s_branch L_feed")
    a(f"s_lshl_b32 s{sT}, s{sKap}, 9")
    a(f"s_lshl_b32 s{sT+1}, s{sC}, 4")
    a(f"s_add_u32 s{sT}, s{sT}, s{sT+1}")
    a(f"s_mul_i32 s{sT}, s{sT}, 896")
    srd(sR0, sWo, off_s=sT, size=16 * 896)
    a(f"v_lshlrev_b32 v{t}, 4, v{vLane}")
    wr = 144
    for r in range(16):
        a(f"s_mov_b32 s{sT+1}, {r*896}")
        a(f"buffer_load_dwordx4 v[{wr+4*r}:{wr+4*r+3}], v{t}, s[{sR0}:{sR0+3}], s{sT+1} offen {wflags}")
    a(f"s_mov_b32 s{sT}, 0x05040100")
    a(f"s_mov_b32 s{sT+1}, 0x07060302")
    a("s_waitcnt vmcnt(0)")
    for pr in range(8):
        r0 = wr + (2 * pr) * 4
        r1 = r0 + 4
        for d in range(4):
            o = vIW + pr * 8 + 2 * d
            a(f"v_perm_b32 v{o}, v{r1+d}, v{r0+d}, s{sT}")
            a(f"v_perm_b32 v{o+1}, v{r1+d}, v{r0+d}, s{sT+1}")
    sM = sQ + 2
    a(f"s_lshr_b32 s{sM}, s2, 3")
    a(f"s_cmp_eq_u32 s{sJ}, 4")
    a(f"s_cselect_b32 s{sM}, s{sM}, 255")
    a(f"s_cmp_lt_u32 s{sM}, {0 if 'nomlp2' in exp else 28}")
    a("s_cbranch_scc0 L_nomlp")
    a(f"s_lshl_b32 s{sT}, s{sM}, 7")
    if 'mlpc' in exp:
        a(f"s_mul_i32 s{sT}, s{sM}, 57344")
    a(f"s_sub_u32 s{sT+1}, {448*3584}, s{sT}")
    if 'guoob' in exp:
        a(f"s_mov_b32 s{sT+1}, 0")
    srd(sR0, sWg, off_s=sT, size_s=sT + 1)
    srd(sR1, sWu, off_s=sT, size_s=sT + 1)
    a(f"v_lshrrev_b32 v{t}, 3, v{vLane}")
    a(f"v_lshlrev_b32 v{t+1}, 2, v{t}")
    a(f"v_mul_u32_u24 v{t}, {128 if 'mlpc' in exp else 3584}, v{t}")
    a(f"v_and_b32 v{t+2}, 7, v{vLane}")
    a(f"v_lshl_add_u32 v{t}, v{t+2}, 4, v{t}")
    acc = vP
    for i in range(16):
        a(f"v_mov_b32 v{acc+i}, 0")
    a(f"s_mov_b32 s{sQ}, 0")
    a(f"s_mov_b32 s{sQ+1}, 0")
    a("L_gu:")
    for k in range(GUK):
        a(f"buffer_load_dwordx4 v[{vW+8*k}:{vW+8*k+3}], v{t}, s[{sR0}:{sR0+3}], s{sQ} offen {mflags}")
        a(f"buffer_load_dwordx4 v[{vW+8*k+4}:{vW+8*k+7}], v{t}, s[{sR1}:{sR1+3}], s{sQ} offen {mflags}")
        a(f"s_add_u32 s{sQ}, s{sQ}, {1024 if 'mlpc' in exp else 8*3584}")
    for k in range(GUK):
        a(f"ds_read_b32 v{vQ+k}, v{t+1} offset:{L_XN + 32*k}")
    a(f"v_add_u32 v{t+1}, {32*GUK}, v{t+1}")
    a("s_waitcnt lgkmcnt(0)")
    for k in range(GUK):
        a(f"s_waitcnt vmcnt({2*(GUK-1-k)})")
        a(f"v_lshrrev_b32 v{t+2}, 16, v{vQ+k}")
        for mtx in range(2):
            for d in range(4):
                w = vW + 8 * k + 4 * mtx + d
                a(f"v_dot2_f32_bf16 v{acc+8*mtx+2*d}, v{w}, v{t+2}, v{acc+8*mtx+2*d}")
                a(f"v_dot2_f32_bf16 v{acc+8*mtx+2*d+1}, v{w}, v{vQ+k}, v{acc+8*mtx+2*d+1}")
    a(f"s_add_u32 s{sQ+1}, s{sQ+1}, 1")
    a(f"s_cmp_lt_u32 s{sQ+1}, {1 if 'gu1' in exp else 56//GUK}")
    a("s_cbranch_scc1 L_gu")
    rem = transposed_reduce([acc + i for i in range(16)])
    a("s_nop 1")
    for r in rem:
        a(f"v_add_f32_dpp v{r}, v{r}, v{r} row_ror:8 row_mask:0xf bank_mask:0xf")
    for i in range(4):
        a(f"v_mov_b32 v{acc+4+i}, v{rem[i]}")
    a("s_nop 1")
    for i in range(4):
        a(f"v_permlane32_swap_b32 v{rem[i]}, v{acc+4+i}")
    a("s_nop 1")
    for i in range(4):
        bf16_round(rem[i], rem[i])
        bf16_round(acc + 4 + i, acc + 4 + i)
        a(f"v_max_f32 v{rem[i]}, 0, v{rem[i]}")
        a(f"v_mul_f32 v{rem[i]}, v{rem[i]}, v{acc+4+i}")
        bf16_round(rem[i], rem[i])
    a(f"v_and_b32 v{t}, 7, v{vLane}")
    a(f"v_lshlrev_b32 v{t}, 5, v{t}")
    a(f"v_bfe_u32 v{t+1}, v{vLane}, 4, 1")
    a(f"v_lshl_add_u32 v{t}, v{t+1}, 4, v{t}")
    a(f"s_mov_b32 s{sSave}, -1")
    a(f"s_mov_b32 s{sSave+1}, 0")
    a(f"s_mov_b64 exec, s[{sSave}:{sSave+1}]")
    a(f"ds_write_b128 v{t}, v[{rem[0]}:{rem[3]}] offset:{L_H}")
    a("s_mov_b64 exec, -1")
    a(f"s_mul_i32 s{sT}, s{sM}, {64*896}")
    srd(sR0, sWd, off_s=sT, size=(0 if 'dnoob' in exp else 64 * 896))
    a(f"v_lshlrev_b32 v{t}, 4, v{vLane}")
    a(f"v_mov_b32 v{t+1}, 0")
    for i in range(8):
        a(f"v_mov_b32 v{acc+i}, 0")
    a(f"s_mov_b32 s{sQ}, 0")
    a(f"s_mov_b32 s{sQ+1}, 0")
    a("s_waitcnt lgkmcnt(0)")
    a("L_dn:")
    for r in range(DNR):
        a(f"buffer_load_dwordx4 v[{vW+4*r}:{vW+4*r+3}], v{t}, s[{sR0}:{sR0+3}], s{sQ} offen {mflags}")
        a(f"s_add_u32 s{sQ}, s{sQ}, 896")
    for q4 in range(DNR // 4):
        a(f"ds_read_b128 v[{vQ+4*q4}:{vQ+4*q4+3}], v{t+1} offset:{L_H + 16*q4}")
    a(f"v_add_u32 v{t+1}, {4*DNR}, v{t+1}")
    a("s_waitcnt lgkmcnt(0)")
    for r in range(DNR):
        a(f"s_waitcnt vmcnt({DNR-1-r})")
        a(f"v_lshrrev_b32 v{t+2}, 16, v{vQ+r}")
        for d in range(4):
            w = vW + 4 * r + d
            a(f"v_dot2_f32_bf16 v{acc+2*d}, v{w}, v{t+2}, v{acc+2*d}")
            a(f"v_dot2_f32_bf16 v{acc+2*d+1}, v{w}, v{vQ+r}, v{acc+2*d+1}")
    a(f"s_add_u32 s{sQ+1}, s{sQ+1}, 1")
    a(f"s_cmp_lt_u32 s{sQ+1}, {1 if 'dn1' in exp else 64//DNR}")
    a("s_cbranch_scc1 L_dn")
    if 'nofbp' not in exp:
        publish48(acc, WS_FB, t, 28, sM)
    a("L_nomlp:")
    a(f"s_cmp_lt_u32 s{sCB}, {0 if 'nofbg' in exp else 21}")
    a("s_cbranch_scc0 L_feed")
    a(f"s_lshl_b32 s{sT}, s{sCB}, 7")
    a(f"s_add_u32 s{sT}, s{sT}, {WS_FB}")
    srd(sR0, sWs, off_s=sT, size=28 * 2688)
    a(f"v_lshrrev_b32 v{t}, 3, v{vLane}")
    a(f"v_and_b32 v{t+1}, 7, v{vLane}")
    a(f"v_lshlrev_b32 v{t+1}, 4, v{t+1}")
    fb = 144
    for k in range(4):
        a(f"v_add_u32 v{t+4}, {8*k}, v{t}")
        a(f"v_min_u32 v{t+4}, 27, v{t+4}")
        a(f"v_mul_u32_u24 v{t+4}, 2688, v{t+4}")
        a(f"v_add_u32 v{fb+16+k}, v{t+4}, v{t+1}")

    def fbloads():
        for k in range(4):
            a(f"buffer_load_dwordx4 v[{fb+4*k}:{fb+4*k+3}], v{fb+16+k}, s[{sR0}:{sR0+3}], 0 offen sc1")
    poll(fbloads, [fb + 4 * k + 3 for k in range(4)], t + 2, "L_pfb", sleep_mid)
    acc = vP
    a(f"v_cmp_gt_u32 vcc, 4, v{t}")
    a("s_nop 1")
    for c in range(3):
        a(f"v_cndmask_b32 v{acc+c}, 0, v{fb+12+c}, vcc")
        a(f"v_add_f32 v{acc+c}, v{acc+c}, v{fb+c}")
        a(f"v_add_f32 v{t+2}, v{fb+4+c}, v{fb+8+c}")
        a(f"v_add_f32 v{acc+c}, v{acc+c}, v{t+2}")
    a("s_nop 1")
    for c in range(3):
        a(f"v_add_f32_dpp v{acc+c}, v{acc+c}, v{acc+c} row_ror:8 row_mask:0xf bank_mask:0xf")
    for c in range(3):
        xrow_reduce(acc + c, t + 2, "v_add_f32")
    a(f"v_mov_b32 v{acc+3}, 0")
    a(f"ds_write_b128 v{t+1}, v[{acc}:{acc+3}] offset:{L_B}")
    a("s_waitcnt lgkmcnt(0)")
    a("L_feed:")
    stamp(4)
    if dyn:
        t = vT
        sF, sN = sQ, sQ + 1
        a(f"s_lshr_b32 s{sT}, s2, 3")
        a(f"s_lshl_b32 s{sT}, s{sT}, 8")
        a(f"s_add_u32 s{sT}, s{sT}, {WS_CT}")
        srd(sCT, sWs, off_s=sT, size=8)
        a(f"v_mov_b32 v{vZ}, 0")
        a(f"v_mov_b32 v{t}, {L_HEAD}")
        a(f"s_mov_b32 s{sF}, s{sA1}")
        if LA2 is not None:
            a(f"s_mov_b32 s{sQ+6}, {LA}")
        if hist:
            a(f"v_mov_b32 v26, 0")
            a(f"s_mov_b32 s{sQ+3}, 0")
        a(f"s_mov_b32 s{sSpin}, 0")
        a("L_feedloop:")
        a(f"ds_read_b32 v{t+1}, v{t}")
        a("s_waitcnt lgkmcnt(0)")
        a(f"v_readfirstlane_b32 s{sN}, v{t+1}")
        if hist:
            a(f"s_lshr_b32 s{sQ+2}, s{sN}, 2")
            a(f"s_cmp_gt_u32 s{sQ+2}, s{sQ+3}")
            a("s_cbranch_scc0 L_nohist")
            a(f"s_mov_b32 s{sQ+3}, s{sQ+2}")
            a(f"s_memrealtime s[{sQ+4}:{sQ+5}]")
            a("s_waitcnt lgkmcnt(0)")
            a(f"s_min_u32 s{sQ+2}, s{sQ+2}, 63")
            a(f"s_mov_b32 m0, s{sQ+2}")
            a(f"v_writelane_b32 v26, s{sQ+4}, m0")
            a("L_nohist:")
        if LA2 is None:
            a(f"s_add_u32 s{sN}, s{sN}, {LA}")
        else:
            a(f"s_add_u32 s{sN}, s{sN}, s{sQ+6}")
        a(f"s_sub_i32 s{sN}, s{sN}, s{sF}")
        a(f"s_cmp_gt_i32 s{sN}, 0")
        a("s_cbranch_scc1 L_feedgo")
        a(f"s_sleep {sleep_feed}")
        a(f"s_add_u32 s{sSpin}, s{sSpin}, 1")
        a(f"s_cmp_lt_u32 s{sSpin}, {MAXSPIN*16}")
        a("s_cbranch_scc1 L_feedloop")
        a("s_branch L_feedend")
        a("L_feedgo:")
        a(f"s_min_u32 s{sN}, s{sN}, 8")
        a("L_feedretry:")
        a("s_mov_b64 exec, 1")
        a(f"v_mov_b32 v{vA}, s{sN}")
        a(f"v_mov_b32 v{vA+1}, 0")
        a(f"buffer_atomic_add_x2 v[{vA}:{vA+1}], v{vZ}, s[{sCT}:{sCT+3}], 0 offen sc0")
        a("s_mov_b64 exec, -1")
        a("s_waitcnt vmcnt(0)")
        a(f"v_readfirstlane_b32 s{sT+1}, v{vA+1}")
        a(f"v_readfirstlane_b32 s{sT}, v{vA}")
        a(f"s_cmp_eq_u32 s{sT+1}, s{sTag}")
        a("s_cbranch_scc1 L_feedok")
        a(f"s_add_u32 s{sSpin}, s{sSpin}, 1")
        a(f"s_cmp_lt_u32 s{sSpin}, {MAXSPIN*16}")
        a("s_cbranch_scc1 L_feedretry")
        a(f"s_mov_b32 s{sT}, {TILES}")
        a("L_feedok:")
        if LA2 is not None:
            a(f"s_cmp_ge_u32 s{sT}, {TILES - LAX}")
            a(f"s_cselect_b32 s{sQ+6}, {LA2}, s{sQ+6}")
        a(f"s_add_u32 s{sT+2}, s{sT}, s{sN}")
        a(f"s_cmp_ge_u32 s{sT+2}, {TILES}")
        a(f"s_cselect_b32 s{sN}, 32, s{sN}")
        a(f"v_add_u32 v{t+2}, s{sT}, v{vLane}")
        a(f"v_add_u32 v{t+3}, s{sF}, v{vLane}")
        a(f"v_lshlrev_b32 v{t+3}, 2, v{t+3}")
        a(f"s_lshl_b64 s[{sSave}:{sSave+1}], 1, s{sN}")
        a(f"s_sub_u32 s{sSave}, s{sSave}, 1")
        a(f"s_subb_u32 s{sSave+1}, s{sSave+1}, 0")
        a(f"s_mov_b64 exec, s[{sSave}:{sSave+1}]")
        a(f"ds_write_b32 v{t+3}, v{t+2} offset:{L_QUE}")
        a("s_mov_b64 exec, -1")
        a(f"s_add_u32 s{sF}, s{sF}, s{sN}")
        a(f"s_cmp_lt_u32 s{sT+2}, {TILES}")
        a("s_cbranch_scc1 L_feedloop")
        a("L_feedend:")
        a("s_waitcnt lgkmcnt(0)")
        if hist:
            a(f"s_lshl_b32 s{sT}, s2, 8")
            a(f"s_add_u32 s{sT}, s{sT}, 0x180000")
            srd(sR0, sWs, off_s=sT, size=256)
            a(f"v_lshlrev_b32 v27, 2, v{vLane}")
            a(f"buffer_store_dword v26, v27, s[{sR0}:{sR0+3}], 0 offen")

    a("L_combine:")
    stamp(5)
    t = vT
    xrow_reduce(vL, t, "v_add_f32")
    a(f"v_bfe_u32 v{t}, v{vLane}, 3, 1")
    a(f"v_lshlrev_b32 v{t+1}, 3, v{t}")
    a(f"s_lshl_b32 s{sT}, s{sWave}, 4")
    a(f"v_add_u32 v{t+1}, s{sT}, v{t+1}")
    a(f"ds_write_b64 v{t+1}, v[{vM}:{vM+1}] offset:{L_ST}")
    a(f"v_lshlrev_b32 v{t+3}, 10, v{t}")
    a(f"v_lshrrev_b32 v{t+4}, 4, v{vLane}")
    a(f"v_lshl_add_u32 v{t+3}, v{t+4}, 7, v{t+3}")
    a(f"v_and_b32 v{t+4}, 7, v{vLane}")
    a(f"v_lshl_add_u32 v{t+3}, v{t+4}, 2, v{t+3}")
    a(f"s_lshl_b32 s{sT}, s{sWave}, 11")
    a(f"v_add_u32 v{t+3}, s{sT}, v{t+3}")
    for h in range(2):
        for ii in range(4):
            a(f"ds_write_b32 v{t+3}, v{vO+4*h+ii} offset:{L_RED + h*512 + ii*32}")
    a(f"s_lshl_b32 s{sT}, s{sKap}, 5")
    a(f"s_add_u32 s{sT}, s{sT}, s{sC}")
    a(f"s_lshl_b32 s{sT}, s{sT}, 13")
    a(f"s_add_u32 s{sT}, s{sT}, {WS_PG}")
    srd(sR0, sWs, off_s=sT, size=8192)
    a(f"s_mov_b32 s{sT+1}, 4096")
    a("s_waitcnt lgkmcnt(0)")
    a("s_barrier")
    st = vP
    a(f"v_mov_b32 v{t+1}, 0")
    for w in range(1, 4):
        a(f"ds_read_b128 v[{st+4*w}:{st+4*w+3}], v{t+1} offset:{L_ST+16*w}")
    a(f"v_lshlrev_b32 v{t}, 2, v0")
    ov = vQ + 8
    for h in range(2):
        for w in range(1, 4):
            a(f"ds_read_b32 v{ov+3*h+w-1}, v{t} offset:{L_RED + w*2048 + h*1024}")
    a(f"v_lshlrev_b32 v{t}, 4, v0")
    a("s_waitcnt lgkmcnt(6)")
    g = vO
    for h in range(2):
        M = g + 4 * h + 1
        Lr = g + 4 * h + 2
        a(f"v_max3_f32 v{M}, v{st+4+2*h}, v{st+8+2*h}, v{st+12+2*h}")
        for w in range(1, 4):
            a(f"v_sub_f32 v{vQ+3*h+w-1}, v{st+4*w+2*h}, v{M}")
        for w in range(1, 4):
            a(f"v_exp_f32 v{vQ+3*h+w-1}, v{vQ+3*h+w-1}")
        a("s_nop 0")
        a(f"v_mul_f32 v{Lr}, v{vQ+3*h}, v{st+4+2*h+1}")
        for w in range(2, 4):
            a(f"v_fmac_f32 v{Lr}, v{vQ+3*h+w-1}, v{st+4*w+2*h+1}")
        a(f"v_mov_b32 v{g+4*h+3}, s{sTag}")
    a("s_waitcnt lgkmcnt(0)")
    for h in range(2):
        a(f"v_mul_f32 v{g+4*h}, v{vQ+3*h}, v{ov+3*h}")
        for w in range(2, 4):
            a(f"v_fmac_f32 v{g+4*h}, v{vQ+3*h+w-1}, v{ov+3*h+w-1}")
    a(f"buffer_store_dwordx4 v[{g}:{g+3}], v{t}, s[{sR0}:{sR0+3}], 0 offen sc1")
    a(f"buffer_store_dwordx4 v[{g+4}:{g+7}], v{t}, s[{sR0}:{sR0+3}], s{sT+1} offen sc1")
    stamp(6)
    if 'notail' in exp:
        a("s_branch L_fin")
    a(f"s_cmp_eq_u32 s{sWave}, 0")
    a("s_cbranch_scc0 L_s1done")
    a(f"s_lshl_b32 s{sT}, s{sKap}, 18")
    a(f"s_lshl_b32 s{sT+1}, s{sC}, 8")
    a(f"s_add_u32 s{sT}, s{sT}, s{sT+1}")
    a(f"s_add_u32 s{sT}, s{sT}, {WS_PG}")
    srd(sR0, sWs, off_s=sT, size=32 * 8192)
    a(f"v_lshrrev_b32 v{t}, 4, v{vLane}")
    a(f"v_lshlrev_b32 v{t}, 13, v{t}")
    a(f"v_and_b32 v{t+1}, 15, v{vLane}")
    a(f"v_lshl_add_u32 v{t}, v{t+1}, 4, v{t}")
    pg = 160

    for k in range(8):
        a(f"v_add_u32 v{pg+32+k}, {k*32768}, v{t}")

    def pload(k):
        a(f"buffer_load_dwordx4 v[{pg+4*k}:{pg+4*k+3}], v{pg+32+k}, s[{sR0}:{sR0+3}], 0 offen sc1")
    poll_masked(8, pload, lambda k: [pg + 4 * k + 3], t + 2, "L_pp", sleep_tail)
    stamp(7)
    a(f"v_max3_f32 v{t+1}, v{pg+1}, v{pg+5}, v{pg+9}")
    a(f"v_max3_f32 v{t+1}, v{t+1}, v{pg+13}, v{pg+17}")
    a(f"v_max3_f32 v{t+1}, v{t+1}, v{pg+21}, v{pg+25}")
    a(f"v_max_f32 v{t+1}, v{t+1}, v{pg+29}")
    xrow_reduce(t + 1, t + 2, "v_max_f32")
    for k in range(8):
        a(f"v_sub_f32 v{pg+4*k+1}, v{pg+4*k+1}, v{t+1}")
    for k in range(8):
        a(f"v_exp_f32 v{pg+4*k+1}, v{pg+4*k+1}")
    a("s_nop 0")
    a(f"v_mul_f32 v{t+3}, v{pg+1}, v{pg}")
    a(f"v_mul_f32 v{t+4}, v{pg+1}, v{pg+2}")
    for k in range(1, 8):
        a(f"v_fmac_f32 v{t+3}, v{pg+4*k+1}, v{pg+4*k}")
        a(f"v_fmac_f32 v{t+4}, v{pg+4*k+1}, v{pg+4*k+2}")
    xrow_reduce(t + 3, t + 2, "v_add_f32")
    xrow_reduce(t + 4, t + 2, "v_add_f32")
    a(f"v_rcp_f32 v{t+5}, v{t+4}")
    a("s_nop 0")
    a(f"v_mul_f32 v{t+6}, v{t+3}, v{t+5}")
    a(f"v_fma_f32 v{t+3}, -v{t+6}, v{t+4}, v{t+3}")
    a(f"v_fma_f32 v{t+3}, v{t+3}, v{t+5}, v{t+6}")
    a("s_nop 1")
    a(f"v_mov_b32_dpp v{t+4}, v{t+3} row_shl:1 row_mask:0xf bank_mask:0xf")
    a("s_nop 0")
    a(f"v_cvt_pk_bf16_f32 v{t+3}, v{t+3}, v{t+4}")
    a("s_nop 0")
    for i in range(8):
        a(f"v_readlane_b32 s{sQ+i}, v{t+3}, {2*i}")
    a("s_nop 1")
    acc = vP
    for pr in range(8):
        for c in range(8):
            c0 = "0" if pr == 0 else f"v{acc+c}"
            a(f"v_dot2_f32_bf16 v{acc+c}, v{vIW+pr*8+c}, s{sQ+pr}, {c0}")
    publish48(acc, WS_FA, t, 256, 2)
    a("L_s1done:")
    stamp(8)
    t = vT
    a(f"s_cmp_lt_u32 s{sCB}, 21")
    a("s_cbranch_scc0 L_fin")
    a("s_barrier")
    a(f"s_lshl_b32 s{sT}, s{sCB}, 7")
    a(f"s_add_u32 s{sT}, s{sT}, {WS_FA}")
    srd(sR0, sWs, off_s=sT, size=256 * 2688)
    a(f"v_lshrrev_b32 v{t}, 3, v0")
    a(f"v_and_b32 v{t+1}, 7, v{t}")
    a(f"v_lshrrev_b32 v{t}, 3, v{t}")
    a(f"v_lshl_add_u32 v{t}, v{t}, 6, v{t+1}")
    a(f"v_mul_u32_u24 v{t}, 2688, v{t}")
    a(f"v_and_b32 v{t+1}, 7, v{vLane}")
    a(f"v_lshlrev_b32 v{t+1}, 4, v{t+1}")
    a(f"v_add_u32 v{t}, v{t}, v{t+1}")
    fa = vQ

    for k in range(8):
        a(f"v_add_u32 v{vW+k}, {k*8*2688}, v{t}")

    def faload(k):
        a(f"buffer_load_dwordx4 v[{fa+4*k}:{fa+4*k+3}], v{vW+k}, s[{sR0}:{sR0+3}], 0 offen sc1")
    a(f"s_mul_i32 s{sT+3}, s{sCB}, 37")
    a(f"s_lshr_b32 s{sT+3}, s{sT+3}, 8")
    a(f"s_mul_i32 s{sT+4}, s{sT+3}, 7")
    a(f"s_sub_u32 s{sT+4}, s{sCB}, s{sT+4}")
    a(f"s_lshl_b32 s{sT+4}, s{sT+4}, 6")
    a(f"s_mul_i32 s{sT+5}, s{sT+3}, 3")
    a(f"s_add_u32 s{sT+4}, s{sT+4}, s{sT+5}")
    a(f"v_and_b32 v{t+4}, 7, v{vLane}")
    a(f"v_lshlrev_b32 v{t+4}, 3, v{t+4}")
    a(f"v_lshrrev_b32 v{t+5}, 3, v{vLane}")
    a(f"v_add_u32 v{t+4}, v{t+4}, v{t+5}")
    a(f"v_add_u32 v{t+4}, s{sT+4}, v{t+4}")
    a(f"v_lshlrev_b32 v{t+4}, 1, v{t+4}")
    a(f"v_add_u32 v{t+6}, s{sT+5}, v{t+5}")
    a(f"v_cmp_gt_u32 vcc, 8, v{t+6}")
    a(f"v_cmp_gt_u32 s[{sSave}:{sSave+1}], 3, v{t+5}")
    a("s_nop 1")
    a(f"s_and_b64 s[{sSave}:{sSave+1}], s[{sSave}:{sSave+1}], vcc")
    srd(sR1, sX, size=896)
    a(f"buffer_load_ushort v{vP+8}, v{t+4}, s[{sR1}:{sR1+3}], 0 offen")
    poll_masked(8, faload, lambda k: [fa + 4 * k + 3], t + 2, "L_pfa", sleep_tail)
    stamp(9)
    acc = vP
    for c in range(3):
        a(f"v_add_f32 v{acc+c}, v{fa+c}, v{fa+4+c}")
        a(f"v_add_f32 v{t+2}, v{fa+8+c}, v{fa+12+c}")
        a(f"v_add_f32 v{acc+c}, v{acc+c}, v{t+2}")
        a(f"v_add_f32 v{t+2}, v{fa+16+c}, v{fa+20+c}")
        a(f"v_add_f32 v{t+3}, v{fa+24+c}, v{fa+28+c}")
        a(f"v_add_f32 v{t+2}, v{t+2}, v{t+3}")
        a(f"v_add_f32 v{acc+c}, v{acc+c}, v{t+2}")
    a("s_nop 1")
    for c in range(3):
        a(f"v_add_f32_dpp v{acc+c}, v{acc+c}, v{acc+c} row_ror:8 row_mask:0xf bank_mask:0xf")
    for c in range(3):
        xrow_reduce(acc + c, t + 2, "v_add_f32")
    a(f"v_mov_b32 v{acc+3}, 0")
    a(f"s_lshl_b32 s{sT}, s{sWave}, 7")
    a(f"v_add_u32 v{t+2}, s{sT}, v{t+1}")
    a(f"ds_write_b128 v{t+2}, v[{acc}:{acc+3}] offset:{L_FIN}")
    srd(sR1, sOut, size=896)
    a("s_waitcnt lgkmcnt(0)")
    a("s_barrier")
    a(f"s_cmp_eq_u32 s{sWave}, 0")
    a("s_cbranch_scc0 L_fin")
    a(f"v_min_u32 v{t+5}, 3, v{t+5}")
    a(f"v_lshl_add_u32 v{t+1}, v{t+5}, 2, v{t+1}")
    for w in range(4):
        a(f"ds_read_b32 v{acc+w}, v{t+1} offset:{L_FIN+128*w}")
    a(f"ds_read_b32 v{acc+4}, v{t+1} offset:{L_B}")
    a("s_waitcnt vmcnt(0) lgkmcnt(0)")
    a(f"v_add_f32 v{acc}, v{acc}, v{acc+1}")
    a(f"v_add_f32 v{acc+2}, v{acc+2}, v{acc+3}")
    a(f"v_add_f32 v{acc}, v{acc}, v{acc+2}")
    bf16_round(acc, acc)
    bf16_round(acc + 4, acc + 4)
    a(f"v_lshlrev_b32 v{acc+8}, 16, v{acc+8}")
    a(f"v_add_f32 v{acc}, v{acc+8}, v{acc}")
    bf16_round(acc, acc)
    a(f"v_add_f32 v{acc}, v{acc}, v{acc+4}")
    a(f"v_cvt_pk_bf16_f32 v{acc}, v{acc}, v{acc}")
    a(f"s_mov_b64 exec, s[{sSave}:{sSave+1}]")
    a(f"buffer_store_short v{acc}, v{t+4}, s[{sR1}:{sR1+3}], 0 offen")
    a("s_mov_b64 exec, -1")
    a(f"s_cmp_eq_u32 s{sCB}, 0")
    a("s_cbranch_scc0 L_fin")
    srd(sR0, sWs, off_imm=WS_EPOCH, size=4)
    a(f"v_mov_b32 v{t}, 0")
    a(f"v_mov_b32 v{t+1}, s{sTag}")
    a("s_mov_b64 exec, 1")
    a(f"buffer_store_dword v{t+1}, v{t}, s[{sR0}:{sR0+3}], 0 offen")
    a("s_mov_b64 exec, -1")
    a("L_fin:")
    if stamps:
        stamp(10)
        a("s_waitcnt lgkmcnt(0)")
        a(f"s_lshl_b32 s{sT}, s2, 2")
        a(f"s_add_u32 s{sT}, s{sT}, s{sWave}")
        a(f"s_lshl_b32 s{sT}, s{sT}, 6")
        a(f"s_add_u32 s{sT}, s{sT}, {WS_STAMP}")
        srd(sR0, sWs, off_s=sT, size=64)
        a("v_mov_b32 v28, 0")
        a("s_mov_b64 exec, 1")
        for i in range(11):
            a(f"v_mov_b32 v27, s{sSt+2*i}")
            a(f"buffer_store_dword v27, v28, s[{sR0}:{sR0+3}], 0 offen offset:{4*i}")
            a("s_nop 1")
        a(f"v_mov_b32 v27, s{sSt+5}")
        a(f"buffer_store_dword v27, v28, s[{sR0}:{sR0+3}], 0 offen offset:44")
        a("s_nop 1")
        a(f"s_getreg_b32 s{sT}, hwreg(HW_REG_XCC_ID)")
        a(f"v_mov_b32 v27, s{sT}")
        a(f"buffer_store_dword v27, v28, s[{sR0}:{sR0+3}], 0 offen offset:60")
    a("L_end:")
    a("s_endpgm")

    head = HEADER + f"; @launch grid=(256,1,1) block=(256,1,1) lds={LDS_BYTES}\n" + DOC
    head += '.amdgcn_target "amdgcn-amd-amdhsa--gfx950"\n.text\n'
    head += f".globl {KN}_kernel\n.p2align 8\n.type {KN}_kernel,@function\n"
    tail = f""".section .rodata,"a"
.p2align 6
.amdhsa_kernel {KN}_kernel
  .amdhsa_next_free_vgpr 512
  .amdhsa_next_free_sgpr 102
  .amdhsa_accum_offset 256
  .amdhsa_group_segment_fixed_size 0
  .amdhsa_kernarg_size 96
  .amdhsa_user_sgpr_count 2
  .amdhsa_user_sgpr_kernarg_segment_ptr 1
  .amdhsa_system_sgpr_workgroup_id_x 1
.end_amdhsa_kernel
"""
    return head + a.text() + tail


if __name__ == "__main__":
    import argparse
    ap = argparse.ArgumentParser()
    ap.add_argument("-o", default="k.s")
    ap.add_argument("--G0", type=int, default=6)
    ap.add_argument("--G", type=int, default=2)
    ap.add_argument("--streamers", default="1,2")
    ap.add_argument("--stamps", action="store_true")
    ap.add_argument("--pfi", type=int, default=None)
    ap.add_argument("--a0mode", default="issue")
    ap.add_argument("--exp", default="")
    ap.add_argument("--static", action="store_true")
    ap.add_argument("--sleep_mid", type=int, default=16)
    ap.add_argument("--sleep_tail", type=int, default=1)
    ap.add_argument("--sleep_q", type=int, default=1)
    ap.add_argument("--NPRE", type=int, default=64)
    ap.add_argument("--NPM", type=int, default=48)
    ap.add_argument("--codepf", action="store_true")
    ap.add_argument("--qmask", action="store_true")
    ap.add_argument("--hist", action="store_true")
    ap.add_argument("--pre", type=int, default=0)
    ap.add_argument("--LA2", type=int, default=None)
    ap.add_argument("--LAX", type=int, default=48)
    ap.add_argument("--mflags", default=None)
    ap.add_argument("--GUK", type=int, default=14)
    ap.add_argument("--DNR", type=int, default=16)
    ap.add_argument("--wflags", default="nt")
    ap.add_argument("--noroll", action="store_true")
    ap.add_argument("--LA", type=int, default=6)
    args = ap.parse_args()
    s = gen(G=args.G, G0=args.G0, streamers=tuple(int(x) for x in args.streamers.split(",")), stamps=args.stamps, pfi=args.pfi,
            a0mode=args.a0mode, exp=args.exp, dyn=not args.static, sleep_mid=args.sleep_mid, sleep_tail=args.sleep_tail, sleep_q=args.sleep_q, NPRE=args.NPRE, NPM=args.NPM, codepf=args.codepf, qmask=args.qmask, hist=args.hist, pre_groups=args.pre, LA2=args.LA2, LAX=args.LAX, mflags=args.mflags, GUK=args.GUK, DNR=args.DNR, LA=args.LA, wflags=args.wflags, roll=not args.noroll)
    open(args.o, "w").write(s)
```

```python
import sys, math, struct

KN = "parallel_sum__gqa_block_cached__glu_gated_reglu__decode"

HEADER = """; Kernarg layout for this problem (96 bytes, ptrs only, base s[0:1]):
"""

DOC = '''; ---------------------------------------------------------------------------------------------
;  Cross-workgroup hand-offs use self-validating {data, tag} granules in d_ws (sc1 stores / sc1 loads);
; ---------------------------------------------------------------------------------------------
'''

WS_EPOCH = 0x0
WS_CT = 0x8000
WS_QG = 0x10000
WS_GG = 0x20000
WS_FA = 0x40000
WS_STAMP = 0x100000
WS_PG = 0x200000
WS_FB = 0x400000

L_Q = 0x0000
L_ST = 0x0410
L_FIN = 0x0480
L_B = 0x0780
L_H = 0x0680
L_XN = 0x0800
L_RED = 0x1000
L_HEAD = 0x0400
L_QUE = 0x3000
LDS_BYTES = 0x4800
EMPTY = 0xFFFFFFFF

TILES = 1024
LIMIT = TILES * 8192
SC = math.log2(math.e) / 16.0
MAXSPIN = 1 << 16


def f2u(f):
    return struct.unpack("<I", struct.pack("<f", f))[0]


class A:
    def __init__(self):
        self.L = []
        self.n = 0

    def __call__(self, s):
        for line in s.strip("\n").split("\n"):
            line = line.strip()
            self.L.append(line if line.endswith(":") else "  " + line)

    def label(self, p="L"):
        self.n += 1
        return f"{p}_{self.n}"

    def text(self):
        return "\n".join(self.L) + "\n"


def gen(G=2, G0=6, streamers=(1, 2), stamps=False, kflags="nt", vflags="nt", sleep_mid=16, sleep_q=1, sleep_tail=1,
        wflags="", a0mode="issue", prio=True, pfi=None, exp="", dyn=True, NPRE=64, LA=6, sleep_feed=4, roll=True, NPM=48, GUK=14, DNR=16, codepf=False, qmask=False, hist=False, pre_groups=0, mflags=None, LA2=None, LAX=48):
    a = A()
    if mflags is None:
        mflags = wflags
    assert G <= G0 <= 13 and (G0 <= 7 or pfi is not None)
    NS = len(streamers)
    sX, sKp, sVp, sWq, sWo, sWg, sWu, sWd, sOut, sDbg, sWs = 4, 6, 8, 10, 12, 16, 18, 20, 22, 24, 26
    sK, sV, sR0, sR1 = 28, 32, 36, 40
    sKap, sC, sWave, sTag, sE = 44, 45, 46, 47, 48
    sT = 49
    sQ = 56
    sPM = 64
    sSpin = 66
    sCB = 67
    sSave = 68
    sSt = 70
    sA1, sA2 = 92, 93
    sC1 = 94
    sJ = 95
    sCT = 96
    sNx, sCur = 100, 101
    vLane, vKoff, vVoff = 1, 2, 3
    vMask = 4
    vS = 8
    vO = 12
    vM, vL = 20, 21
    vT = 22
    vQ = 32
    vP = 64
    vIW = 80
    vW = 144
    vX = 8
    vA = 30
    vZ = 29
    vE, vAd, vTk, vOne, vHd = 80, 81, 82, 83, 84

    def stamp(i):
        if stamps:
            a(f"s_memrealtime s[{sSt+2*i}:{sSt+2*i+1}]")

    def srd(s, base, off_s=None, off_imm=0, size=None, size_s=None):
        if off_s is not None:
            a(f"s_add_u32 s{s}, s{base}, s{off_s}")
            a(f"s_addc_u32 s{s+1}, s{base+1}, 0")
        elif off_imm:
            a(f"s_add_u32 s{s}, s{base}, {off_imm}")
            a(f"s_addc_u32 s{s+1}, s{base+1}, 0")
        else:
            a(f"s_mov_b32 s{s}, s{base}")
            a(f"s_mov_b32 s{s+1}, s{base+1}")
        if size_s is not None:
            a(f"s_mov_b32 s{s+2}, s{size_s}")
        else:
            a(f"s_mov_b32 s{s+2}, {size}")
        a(f"s_mov_b32 s{s+3}, 0x00020000")

    def xrow_reduce(v, t, op):
        a(f"v_mov_b32 v{t}, v{v}")
        a("s_nop 1")
        a(f"v_permlane16_swap_b32 v{v}, v{t}")
        a("s_nop 1")
        a(f"{op} v{v}, v{v}, v{t}")
        a(f"v_mov_b32 v{t}, v{v}")
        a("s_nop 1")
        a(f"v_permlane32_swap_b32 v{v}, v{t}")
        a("s_nop 1")
        a(f"{op} v{v}, v{v}, v{t}")

    def row16_reduce(regs, op="v_add_f32"):
        for ctl in ("quad_perm:[1,0,3,2]", "quad_perm:[2,3,0,1]", "row_half_mirror", "row_mirror"):
            a("s_nop 1")
            for r in regs:
                a(f"{op}_dpp v{r}, v{r}, v{r} {ctl} row_mask:0xf bank_mask:0xf")

    def transposed_reduce(regs):
        n = len(regs) // 2
        a("s_nop 1")
        for i in range(n):
            a(f"v_permlane32_swap_b32 v{regs[i]}, v{regs[i+n]}")
        a("s_nop 1")
        for i in range(n):
            a(f"v_add_f32 v{regs[i]}, v{regs[i]}, v{regs[i+n]}")
        regs = regs[:n]
        n = n // 2
        a("s_nop 1")
        for i in range(n):
            a(f"v_permlane16_swap_b32 v{regs[i]}, v{regs[i+n]}")
        a("s_nop 1")
        for i in range(n):
            a(f"v_add_f32 v{regs[i]}, v{regs[i]}, v{regs[i+n]}")
        return regs[:n]

    def bf16_round(dst, src):
        a(f"v_cvt_pk_bf16_f32 v{dst}, v{src}, v{src}")
        a(f"v_lshlrev_b32 v{dst}, 16, v{dst}")

    def poll(loads, tagregs, tmp, lbl, sleep):
        L = a.label(lbl)
        Lok = a.label(lbl + "ok")
        a(f"s_mov_b32 s{sSpin}, 0")
        a(f"{L}:")
        loads()
        a("s_waitcnt vmcnt(0)")
        first = True
        for r in tagregs:
            if first:
                a(f"v_xor_b32 v{tmp}, s{sTag}, v{r}")
                first = False
            else:
                a(f"v_xor_b32 v{tmp+1}, s{sTag}, v{r}")
                a(f"v_or_b32 v{tmp}, v{tmp}, v{tmp+1}")
        a(f"v_cmp_ne_u32 vcc, 0, v{tmp}")
        a("s_nop 4")
        a(f"s_cbranch_vccz {Lok}")
        a(f"s_add_u32 s{sSpin}, s{sSpin}, 1")
        a(f"s_cmp_lt_u32 s{sSpin}, {MAXSPIN}")
        if sleep:
            a(f"s_sleep {sleep}")
        a(f"s_cbranch_scc1 {L}")
        a(f"{Lok}:")

    def poll_masked(nk, load_k, tags_k, tmp, lbl, sleep):
        L = a.label(lbl)
        Lok = a.label(lbl + "ok")
        sPend = sPM
        a(f"s_mov_b32 s{sSpin}, 0")
        a(f"s_mov_b32 s{sPend}, {(1 << nk) - 1}")
        a(f"{L}:")
        for k in range(nk):
            sk = a.label(lbl + "s")
            a(f"s_bitcmp1_b32 s{sPend}, {k}")
            a(f"s_cbranch_scc0 {sk}")
            load_k(k)
            a(f"{sk}:")
        a("s_waitcnt vmcnt(0)")
        for k in range(nk):
            tg = tags_k(k)
            if len(tg) == 1:
                a(f"v_cmp_ne_u32 vcc, s{sTag}, v{tg[0]}")
            else:
                a(f"v_xor_b32 v{tmp}, s{sTag}, v{tg[0]}")
                for r in tg[1:]:
                    a(f"v_xor_b32 v{tmp+1}, s{sTag}, v{r}")
                    a(f"v_or_b32 v{tmp}, v{tmp}, v{tmp+1}")
                a(f"v_cmp_ne_u32 vcc, 0, v{tmp}")
            a("s_nop 0")
            a("s_cmp_eq_u64 vcc, 0")
            a(f"s_cselect_b32 s{sPend+1}, {hex((~(1 << k)) & 0xffffffff)}, -1")
            a(f"s_and_b32 s{sPend}, s{sPend}, s{sPend+1}")
        a(f"s_cmp_eq_u32 s{sPend}, 0")
        a(f"s_cbranch_scc1 {Lok}")
        a(f"s_add_u32 s{sSpin}, s{sSpin}, 1")
        a(f"s_cmp_lt_u32 s{sSpin}, {MAXSPIN}")
        if sleep:
            a(f"s_sleep {sleep}")
        a(f"s_cbranch_scc1 {L}")
        a(f"{Lok}:")

    def publish48(acc, ws_off, t, nprod, sprod):
        q = vW
        for g in range(3):
            for i in range(3):
                k = 3 * g + i
                if k < 8:
                    a(f"v_mov_b32 v{q+4*g+i}, v{acc+k}")
                else:
                    a(f"v_mov_b32 v{q+4*g+i}, 0")
            a(f"v_mov_b32 v{q+4*g+3}, s{sTag}")
        a(f"s_mul_i32 s{sT}, s{sprod}, 2688")
        a(f"s_add_u32 s{sT}, s{sT}, {ws_off}")
        srd(sR0, sWs, off_s=sT, size=2688)
        a(f"v_lshlrev_b32 v{t}, 4, v{vLane}")
        a(f"s_mov_b32 s{sSave}, -1")
        a(f"s_mov_b32 s{sSave+1}, 0x00ffffff")
        a(f"s_mov_b64 exec, s[{sSave}:{sSave+1}]")
        for g in range(3):
            a(f"buffer_store_dwordx4 v[{q+4*g}:{q+4*g+3}], v{t}, s[{sR0}:{sR0+3}], 0 offen offset:{896*g} sc1")
        a("s_mov_b64 exec, -1")

    ntile0 = (G0 + 1) // 2
    T = 2 * (G0 - G)
    n0 = T
    tau0 = n0 // 2
    F = (G + 1) // 2
    NSTAT = max(tau0 + F + 1, ntile0)
    S0 = 24 * ntile0 + (NSTAT - ntile0) * 8 * NS
    if not dyn:
        NPRE = (TILES - S0 + 7) // 8 + 16
    if not dyn:
        NPM = NPRE
    NPM = min(NPM, NPRE)
    CT0 = S0 + 8 * NPRE
    CT0M = S0 + 8 * NPM + 7 * (NPRE - NPM)

    a(f"{KN}_kernel:")
    a("s_cmp_ge_u32 s2, 256")
    a("s_cbranch_scc1 L_end")
    if stamps:
        for i in range(22):
            a(f"s_mov_b32 s{sSt+i}, 0")
    stamp(0)
    a("s_load_dwordx16 s[4:19], s[0:1], 0")
    a("s_load_dwordx8 s[20:27], s[0:1], 64")
    a(f"v_and_b32 v{vLane}, 63, v0")
    a(f"v_lshrrev_b32 v{vT}, 6, v0")
    a(f"s_bfe_u32 s{sKap}, s2, 0x30003")
    a(f"s_lshr_b32 s{sC}, s2, 6")
    a(f"s_lshl_b32 s{sC}, s{sC}, 3")
    a(f"s_and_b32 s{sJ}, s2, 7")
    a(f"s_add_u32 s{sC}, s{sC}, s{sJ}")
    a(f"v_readfirstlane_b32 s{sWave}, v{vT}")
    a(f"s_cmp_eq_u32 s{sWave}, 0")
    a("s_cbranch_scc1 L_helper1")
    if codepf:
        a(f"s_cmp_eq_u32 s{sWave}, 3")
        a("s_cbranch_scc0 L_nocpf")
        a(f"s_getpc_b64 s[{sR0}:{sR0+1}]")
        a("L_pcref:")
        a(f"s_sub_u32 s{sR0}, s{sR0}, L_pcref-{KN}_kernel")
        a(f"s_subb_u32 s{sR0+1}, s{sR0+1}, 0")
        a(f"v_lshlrev_b32 v{vT+3}, 7, v{vLane}")
        for k in range(4):
            a(f"v_add_u32 v{vT+4}, {k*8192}, v{vT+3}")
            a(f"v_min_u32 v{vT+4}, L_end-{KN}_kernel, v{vT+4}")
            a(f"global_load_dword v{vT+5}, v{vT+4}, s[{sR0}:{sR0+1}]")
        a("L_nocpf:")
    a(f"v_and_b32 v{vT+1}, 15, v{vLane}")
    a(f"v_lshrrev_b32 v{vT+2}, 4, v{vLane}")
    a(f"v_lshlrev_b32 v{vKoff}, 9, v{vT+1}")
    a(f"v_lshl_add_u32 v{vKoff}, v{vT+2}, 4, v{vKoff}")
    a(f"v_lshlrev_b32 v{vVoff}, 11, v{vT+2}")
    a(f"v_lshl_add_u32 v{vVoff}, v{vT+1}, 4, v{vVoff}")
    a(f"s_lshl_b32 s{sT}, s{sKap}, 25")
    a(f"s_lshr_b32 s{sT+1}, s2, 6")
    a(f"s_lshl_b32 s{sT+1}, s{sT+1}, 23")
    a(f"s_add_u32 s{sT}, s{sT}, s{sT+1}")
    a(f"s_mul_i32 s{sA1}, s{sJ}, 3")
    a(f"s_add_u32 s{sA1}, s{sA1}, s{sWave}")
    a(f"s_sub_u32 s{sA1}, s{sA1}, 1")
    a(f"s_lshl_b32 s{sA1}, s{sA1}, 13")
    a(f"s_mov_b32 s{sQ}, s{sA1}")
    a("s_waitcnt lgkmcnt(0)")
    a(f"s_load_dword s{sE}, s[{sWs}:{sWs+1}], {WS_EPOCH}")
    srd(sK, sKp, off_s=sT, size=LIMIT)
    srd(sV, sVp, off_s=sT, size=LIMIT)
    if a0mode != "none" and pre_groups == 0:
        a("s_barrier")

    koff = lambda j: j * 64
    voff = lambda j: (j >> 1) * 512 + (j & 1) * 256

    def sreg(slot, j):
        if 'vslots' in exp:
            r = 96 + slot * 32 + j * 4
            return f"v[{r}:{r+3}]"
        if slot < 8:
            r = slot * 32 + j * 4
            return f"a[{r}:{r+3}]"
        r = 96 + (slot - 8) * 32 + j * 4
        return f"v[{r}:{r+3}]"

    def issue_group(n_is_k, slot, soff):
        for j in range(8):
            if n_is_k:
                a(f"buffer_load_dwordx4 {sreg(slot,j)}, v{vKoff}, s[{sK}:{sK+3}], s{soff} offen offset:{koff(j)} {kflags}")
            else:
                a(f"buffer_load_dwordx4 {sreg(slot,j)}, v{vVoff}, s[{sV}:{sV+3}], s{soff} offen offset:{voff(j)} {vflags}")

    for n in range(G0):
        if n % 2 == 0 and n > 0:
            a(f"s_add_u32 s{sQ}, s{sQ}, {24*8192}")
        issue_group(n % 2 == 0, n, sQ)
        if pre_groups and n == pre_groups - 1:
            a("s_barrier")
        if pfi is not None and n >= pfi and n < G0 - 1:
            a(f"s_waitcnt vmcnt({8*pfi})")
    stamp(1)
    a(f"v_and_b32 v{vT+6}, 1, v{vLane}")
    a(f"v_cmp_eq_u32 vcc, 1, v{vT+6}")
    a(f"v_mov_b32 v{vT+4}, 0xffff")
    a(f"v_mov_b32 v{vT+5}, 0xffff0000")
    a(f"v_cndmask_b32 v{vT+4}, v{vT+4}, v{vT+5}, vcc")
    a(f"v_bfe_u32 v{vT+6}, v{vLane}, 1, 2")
    for j in range(4):
        a(f"v_cmp_eq_u32 vcc, {j}, v{vT+6}")
        a("s_nop 1")
        a(f"v_cndmask_b32 v{vMask+j}, 0, v{vT+4}, vcc")
    a(f"v_mov_b32 v{vM}, {hex(f2u(-1e30))}")
    a(f"v_mov_b32 v{vL}, 0")
    for i in range(8):
        a(f"v_mov_b32 v{vO+i}, 0")
    smask = sum(1 << w for w in streamers)
    a(f"s_lshr_b32 s{sT}, {smask}, s{sWave}")
    a(f"s_and_b32 s{sPM}, s{sT}, 1")
    a(f"s_mov_b32 s{sPM+1}, 0")
    a(f"s_lshl_b32 s{sT}, 1, s{sWave}")
    a(f"s_sub_u32 s{sT}, s{sT}, 1")
    a(f"s_and_b32 s{sT}, s{sT}, {smask}")
    a(f"s_bcnt1_i32_b32 s{sT}, s{sT}")
    a(f"s_mul_i32 s{sA2}, s{sJ}, {NS}")
    a(f"s_add_u32 s{sA2}, s{sA2}, s{sT}")
    a(f"s_add_u32 s{sA2}, s{sA2}, {24*ntile0}")
    a(f"s_lshl_b32 s{sA2}, s{sA2}, 13")
    a(f"s_cmp_eq_u32 s{sPM}, 1")
    a(f"s_cselect_b32 s{sA2}, s{sA2}, {LIMIT}")
    a(f"v_mov_b32 v{vHd}, {L_HEAD}")
    a(f"v_mov_b32 v{vOne}, 1")
    a(f"s_mov_b32 s{sC1}, {hex(f2u(SC))}")
    a("s_waitcnt lgkmcnt(0)")
    a(f"s_mul_i32 s{sTag}, s{sE}, 0x9E3779B1")
    a(f"s_add_u32 s{sTag}, s{sTag}, 0x7F4A7C15")
    a("s_branch L_barB")

    a("L_helper1:")
    if prio:
        a("s_setprio 3")
    t = vT
    a(f"s_lshr_b32 s{sT+5}, s2, 3")
    a(f"s_lshl_b32 s{sT+5}, s{sT+5}, 2")
    a(f"s_add_u32 s{sT+5}, s{sT+5}, s{sJ}")
    a(f"s_lshr_b32 s{sT}, s{sT+5}, 1")
    a(f"s_lshl_b32 s{sT}, s{sT}, 7")
    a(f"s_lshl_b32 s{sT+3}, s{sT+5}, 9")
    a(f"s_add_u32 s{sT+3}, s{sT+3}, {WS_QG}")
    a(f"s_and_b32 s{sT+4}, s{sT+5}, 1")
    a(f"s_mov_b32 s{sT+1}, 8192")
    a(f"s_sub_u32 s{sT+2}, {448*8192}, s{sT}")
    a(f"s_cmp_lt_u32 s{sJ}, {0 if 'nounit' in exp else 4}")
    a(f"s_cselect_b32 s{sT+2}, s{sT+2}, 0")
    a(f"v_lshrrev_b32 v{t}, 3, v{vLane}")
    a(f"v_mul_lo_u32 v{t}, v{t}, s{sT+1}")
    a(f"v_and_b32 v{t+1}, 7, v{vLane}")
    a(f"v_lshl_add_u32 v{t}, v{t+1}, 4, v{t}")
    a(f"v_lshlrev_b32 v{t+2}, 1, v{vLane}")
    a(f"s_mul_i32 s{sQ}, s{sT+4}, 224")
    a(f"s_mul_i32 s{sQ}, s{sQ}, s{sT+1}")
    a(f"s_lshl_b32 s{sQ+1}, s{sT+1}, 3")
    a("s_waitcnt lgkmcnt(0)")
    a(f"s_load_dword s{sE}, s[{sWs}:{sWs+1}], {WS_EPOCH}")
    srd(sR1, sWq, off_s=sT, size_s=sT + 2)
    srd(sR0, sX, size=896)
    for k in range(7):
        a(f"buffer_load_ushort v{vX+k}, v{t+2}, s[{sR0}:{sR0+3}], 0 offen offset:{128*k}")
    for i in range(28):
        a(f"buffer_load_dwordx4 v[{vW+4*i}:{vW+4*i+3}], v{t}, s[{sR1}:{sR1+3}], s{sQ} offen {wflags}")
        if i < 27:
            a(f"s_add_u32 s{sQ}, s{sQ}, s{sQ+1}")
    if a0mode == "issue":
        a("s_barrier")
    stamp(1)
    a("s_waitcnt lgkmcnt(0)")
    a(f"s_mul_i32 s{sTag}, s{sE}, 0x9E3779B1")
    a(f"s_add_u32 s{sTag}, s{sTag}, 0x7F4A7C15")
    a(f"s_lshr_b32 s{sE}, s2, 3")
    a(f"s_cmp_lt_u32 s{sE}, {28 if NPM < NPRE else 0}")
    a(f"s_cselect_b32 s{sQ+2}, 7, 8")
    a(f"s_mov_b32 s{sQ+4}, {CT0}")
    a(f"s_cselect_b32 s{sQ+4}, {CT0M}, s{sQ+4}")
    a(f"s_cselect_b32 s{sQ+5}, 1, 0")
    a(f"s_cmp_gt_u32 s{sJ}, 4")
    a(f"s_cselect_b32 s{sQ+3}, s{sQ+5}, 0")
    a(f"s_sub_u32 s{sQ+3}, s{sJ}, s{sQ+3}")
    a(f"s_cmp_eq_u32 s{sJ}, 4")
    a(f"s_cselect_b32 s{sQ+5}, s{sQ+5}, 0")
    a(f"s_cmp_eq_u32 s{sQ+5}, 1")
    a(f"s_mov_b32 s{sA1}, {NPRE}")
    a(f"s_cselect_b32 s{sA1}, {NPM}, s{sA1}")
    a(f"s_cmp_eq_u32 s{sJ}, 0")
    a("s_cbranch_scc0 L_noctinit")
    a(f"s_lshr_b32 s{sE}, s2, 3")
    a(f"s_lshl_b32 s{sE}, s{sE}, 8")
    a(f"s_add_u32 s{sE}, s{sE}, {WS_CT}")
    srd(sCT, sWs, off_s=sE, size=8)
    a(f"v_mov_b32 v{vA}, s{sQ+4}")
    a(f"v_mov_b32 v{vA+1}, s{sTag}")
    a(f"v_mov_b32 v{vZ}, 0")
    a("s_mov_b64 exec, 1")
    a(f"buffer_store_dwordx2 v[{vA}:{vA+1}], v{vZ}, s[{sCT}:{sCT+3}], 0 offen sc1")
    a("s_mov_b64 exec, -1")
    a("s_waitcnt vmcnt(29)")
    a("s_branch L_ctdone")
    a("L_noctinit:")
    a("s_waitcnt vmcnt(28)")
    a("L_ctdone:")
    if 'noq' in exp:
        a(f"v_mov_b32 v{vM}, {hex(f2u(-1e30))}")
        a(f"v_mov_b32 v{vL}, 0")
        for i in range(8):
            a(f"v_mov_b32 v{vO+i}, 0")
        a("s_waitcnt vmcnt(0) lgkmcnt(0)")
        a("s_setprio 0")
        a("s_branch L_barB")
    for k in range(7):
        a(f"v_lshlrev_b32 v{vX+k}, 16, v{vX+k}")
    u = vQ
    a(f"v_add_f32 v{u}, v{vX}, v{vX+1}")
    for k in range(2, 7):
        a(f"v_add_f32 v{u}, v{u}, v{vX+k}")
    row16_reduce([u])
    a("s_nop 1")
    xrow_reduce(u, u + 1, "v_add_f32")
    a(f"v_mul_f32 v{u}, {hex(f2u(1.0/448))}, v{u}")
    a(f"v_sub_f32 v{u+2}, v{vX}, v{u}")
    a(f"v_mul_f32 v{u+3}, v{u+2}, v{u+2}")
    for k in range(1, 7):
        a(f"v_sub_f32 v{u+2}, v{vX+k}, v{u}")
        a(f"v_fmac_f32 v{u+3}, v{u+2}, v{u+2}")
    row16_reduce([u + 3])
    a("s_nop 1")
    xrow_reduce(u + 3, u + 1, "v_add_f32")
    a(f"v_mul_f32 v{u+3}, {hex(f2u(1.0/448))}, v{u+3}")
    bf16_round(u + 3, u + 3)
    a(f"v_add_f32 v{u+3}, {hex(f2u(1e-5))}, v{u+3}")
    bf16_round(u + 3, u + 3)
    a(f"v_sqrt_f32 v{u+3}, v{u+3}")
    a("s_nop 0")
    bf16_round(u + 3, u + 3)
    bf16_round(u, u)
    a(f"v_rcp_f32 v{u+4}, v{u+3}")
    a("s_nop 0")
    for k in range(7):
        d = vX + k
        a(f"v_sub_f32 v{d}, v{d}, v{u}")
        bf16_round(d, d)
        a(f"v_mul_f32 v{u+5}, v{d}, v{u+4}")
        a(f"v_fma_f32 v{d}, -v{u+5}, v{u+3}, v{d}")
        a(f"v_fma_f32 v{d}, v{d}, v{u+4}, v{u+5}")
        bf16_round(d, d)
    a(f"v_lshlrev_b32 v{t+3}, 2, v{vLane}")
    for k in range(7):
        a(f"ds_write_b32 v{t+3}, v{vX+k} offset:{L_XN + 256*k}")
    a(f"v_lshrrev_b32 v{t+3}, 3, v{vLane}")
    a(f"v_lshlrev_b32 v{t+3}, 2, v{t+3}")
    a(f"s_mul_i32 s{sQ}, s{sT+4}, 896")
    a(f"v_add_u32 v{t+3}, s{sQ}, v{t+3}")
    a("s_waitcnt lgkmcnt(0)")
    xr = vQ + 4
    for i in range(28):
        a(f"ds_read_b32 v{xr+i}, v{t+3} offset:{L_XN + 32*i}")
    acc = vP
    for i in range(8):
        a(f"v_mov_b32 v{acc+i}, 0")
    a("s_waitcnt lgkmcnt(0)")
    for i in range(28):
        a(f"s_waitcnt vmcnt({27-i})")
        a(f"v_lshrrev_b32 v{t+4}, 16, v{xr+i}")
        for d in range(4):
            w = vW + 4 * i + d
            a(f"v_dot2c_f32_bf16 v{acc+2*d}, v{w}, v{t+4}")
            a(f"v_dot2c_f32_bf16 v{acc+2*d+1}, v{w}, v{xr+i}")
    if a0mode == "landed":
        a("s_barrier")
    rem = transposed_reduce([acc + i for i in range(8)])
    a("s_nop 1")
    for r in rem:
        a(f"v_add_f32_dpp v{r}, v{r}, v{r} row_ror:8 row_mask:0xf bank_mask:0xf")
    a(f"v_mov_b32 v{acc+4}, v{rem[0]}")
    a(f"v_mov_b32 v{acc+5}, s{sTag}")
    a(f"v_mov_b32 v{acc+6}, v{rem[1]}")
    a(f"v_mov_b32 v{acc+7}, s{sTag}")
    a(f"v_and_b32 v{t+3}, 7, v{vLane}")
    a(f"v_lshlrev_b32 v{t+3}, 6, v{t+3}")
    a(f"v_lshrrev_b32 v{t+4}, 4, v{vLane}")
    a(f"v_lshl_add_u32 v{t+3}, v{t+4}, 4, v{t+3}")
    a(f"s_cmp_lt_u32 s{sJ}, 4")
    a("s_cbranch_scc0 L_nopub")
    srd(sR0, sWs, off_s=sT + 3, size=512)
    a(f"s_mov_b32 s{sSave}, 0x00ff00ff")
    a(f"s_mov_b32 s{sSave+1}, 0x00ff00ff")
    a(f"s_mov_b64 exec, s[{sSave}:{sSave+1}]")
    a(f"buffer_store_dwordx4 v[{acc+4}:{acc+7}], v{t+3}, s[{sR0}:{sR0+3}], 0 offen sc1")
    a("s_mov_b64 exec, -1")
    a("L_nopub:")
    stamp(2)
    a(f"v_lshlrev_b32 v{t+3}, 4, v{vLane}")
    a(f"v_mov_b32 v{vQ}, -1")
    a(f"v_mov_b32 v{vQ+1}, -1")
    a(f"v_mov_b32 v{vQ+2}, -1")
    a(f"v_mov_b32 v{vQ+3}, -1")
    for i in range(4):
        a(f"ds_write_b128 v{t+3}, v[{vQ}:{vQ+3}] offset:{L_QUE + 1024*i}")
    a(f"v_lshlrev_b32 v{t+3}, 2, v{vLane}")
    a(f"ds_write_b32 v{t+3}, v{vQ} offset:{L_QUE + 4096}")
    a(f"ds_write_b32 v{t+3}, v{vQ} offset:{L_QUE + 4096 + 256}")
    a(f"s_add_u32 s{sE}, s{sJ}, {S0}")
    a(f"s_add_u32 s{sQ+3}, s{sQ+3}, {S0 + 8*NPM}")
    for blk in range((NPRE + 63) // 64):
        a(f"v_add_u32 v{vQ+4}, {blk*64}, v{vLane}")
        a(f"v_lshlrev_b32 v{t+4}, 3, v{vQ+4}")
        a(f"v_add_u32 v{t+4}, s{sE}, v{t+4}")
        a(f"v_subrev_u32 v{vQ+5}, {NPM}, v{vQ+4}")
        a(f"v_mul_lo_u32 v{vQ+5}, v{vQ+5}, s{sQ+2}")
        a(f"v_add_u32 v{vQ+5}, s{sQ+3}, v{vQ+5}")
        a(f"v_cmp_gt_u32 vcc, {NPM}, v{vQ+4}")
        a("s_nop 1")
        a(f"v_cndmask_b32 v{t+4}, v{vQ+5}, v{t+4}, vcc")
        a(f"v_cmp_gt_u32 vcc, s{sA1}, v{vQ+4}")
        a("s_nop 1")
        a(f"v_cndmask_b32 v{t+4}, v{vQ}, v{t+4}, vcc")
        a(f"ds_write_b32 v{t+3}, v{t+4} offset:{L_QUE + 256*blk}")
    a(f"v_mov_b32 v{t+4}, 0")
    a(f"v_mov_b32 v{t+3}, {L_HEAD}")
    a(f"ds_write_b32 v{t+3}, v{t+4}")
    a(f"s_lshl_b32 s{sT}, s{sKap}, 13")
    a(f"s_add_u32 s{sT}, s{sT}, {WS_QG}")
    srd(sR0, sWs, off_s=sT, size=8192)
    a(f"v_lshlrev_b32 v{t}, 4, v{vLane}")
    a(f"s_mov_b32 s{sT+1}, 4096")
    qg = vW

    def qload(b):
        so = "0" if b < 4 else f"s{sT+1}"
        a(f"buffer_load_dwordx4 v[{qg+4*b}:{qg+4*b+3}], v{t}, s[{sR0}:{sR0+3}], {so} offen offset:{(b%4)*1024} sc1")
    if qmask:
        poll_masked(8, qload, lambda b: [qg + 4 * b + 1, qg + 4 * b + 3], t + 2, "L_pq", sleep_q)
    else:
        poll(lambda: [qload(b) for b in range(8)], [qg + 4 * b + k for b in range(8) for k in (1, 3)], t + 2, "L_pq", sleep_q)
    for b in range(8):
        a(f"v_permlane32_swap_b32 v{qg+4*b}, v{qg+4*b+2}")
    a("s_nop 1")
    for b in range(8):
        a(f"v_add_f32 v{qg+4*b}, v{qg+4*b}, v{qg+4*b+2}")
    for b in range(8):
        a(f"v_cvt_pk_bf16_f32 v{qg+4*b}, v{qg+4*b}, v{qg+4*b}")
    a(f"v_and_b32 v{t}, 31, v{vLane}")
    a(f"v_lshlrev_b32 v{t}, 2, v{t}")
    a(f"v_lshrrev_b32 v{t+1}, 5, v{vLane}")
    a(f"v_lshl_add_u32 v{t}, v{t+1}, 1, v{t}")
    for b in range(8):
        a(f"ds_write_b16 v{t}, v{qg+4*b} offset:{L_Q + 128*b}")
    a(f"v_mov_b32 v{vM}, {hex(f2u(-1e30))}")
    a(f"v_mov_b32 v{vL}, 0")
    for i in range(8):
        a(f"v_mov_b32 v{vO+i}, 0")
    a("s_waitcnt lgkmcnt(0)")
    if prio:
        a("s_setprio 0")
    a("L_barB:")
    a("s_barrier")
    stamp(3)
    a(f"s_lshr_b32 s{sCB}, s2, 3")
    a(f"s_cmp_eq_u32 s{sJ}, 5")
    a(f"s_cselect_b32 s{sCB}, s{sCB}, 255")
    a(f"s_cmp_eq_u32 s{sWave}, 0")
    a("s_cbranch_scc1 L_helper2")
    t = vT
    a(f"v_bfe_u32 v{t}, v{vLane}, 3, 1")
    a(f"v_lshlrev_b32 v{t}, 9, v{t}")
    a(f"v_lshrrev_b32 v{t+1}, 4, v{vLane}")
    a(f"v_lshl_add_u32 v{t}, v{t+1}, 4, v{t}")
    for j in range(8):
        a(f"ds_read_b128 v[{vQ+4*j}:{vQ+4*j+3}], v{t} offset:{L_Q + 64*j}")
    a("s_waitcnt lgkmcnt(0)")

    def qk(slot):
        for j in range(8):
            c = "0" if j == 0 else f"v[{vS}:{vS+3}]"
            a(f"v_mfma_f32_16x16x32_bf16 v[{vS}:{vS+3}], {sreg(slot,j)}, v[{vQ+4*j}:{vQ+4*j+3}], {c}")

    def softmax():
        t = vT
        if 'nosm' in exp:
            return
        a(f"v_cvt_pk_bf16_f32 v{t}, v{vS}, v{vS+1}")
        a(f"v_cvt_pk_bf16_f32 v{t+1}, v{vS+2}, v{vS+3}")
        a(f"v_lshlrev_b32 v{vS}, 16, v{t}")
        a(f"v_and_b32 v{vS+1}, 0xffff0000, v{t}")
        a(f"v_lshlrev_b32 v{vS+2}, 16, v{t+1}")
        a(f"v_and_b32 v{vS+3}, 0xffff0000, v{t+1}")
        a(f"v_max3_f32 v{t}, v{vS}, v{vS+1}, v{vS+2}")
        a(f"v_max_f32 v{t}, v{t}, v{vS+3}")
        xrow_reduce(t, t + 1, "v_max_f32")
        a(f"v_mul_f32 v{t}, s{sC1}, v{t}")
        a(f"v_max_f32 v{t}, v{t}, v{vM}")
        a(f"v_sub_f32 v{t+1}, v{vM}, v{t}")
        a(f"v_exp_f32 v{t+1}, v{t+1}")
        a(f"v_mov_b32 v{vM}, v{t}")
        for i in range(4):
            a(f"v_fma_f32 v{vS+i}, v{vS+i}, s{sC1}, -v{t}")
        for i in range(4):
            a(f"v_exp_f32 v{vS+i}, v{vS+i}")
        for i in range(8):
            a(f"v_mul_f32 v{vO+i}, v{vO+i}, v{t+1}")
        a(f"v_add_f32 v{t+2}, v{vS}, v{vS+1}")
        a(f"v_add_f32 v{t+3}, v{vS+2}, v{vS+3}")
        a(f"v_add_f32 v{t+2}, v{t+2}, v{t+3}")
        a(f"v_fma_f32 v{vL}, v{vL}, v{t+1}, v{t+2}")
        for i in range(4):
            a(f"v_cvt_pk_bf16_f32 v{t+2+i}, v{vS+i}, v{vS+i}")
        for i in range(4):
            for j in range(4):
                a(f"v_and_b32 v{vP+4*i+j}, v{t+2+i}, v{vMask+j}")

    def pv(slot):
        for i in range(4):
            for h in range(2):
                a(f"v_mfma_f32_16x16x32_bf16 v[{vO+4*h}:{vO+4*h+3}], {sreg(slot,i*2+h)}, v[{vP+4*i}:{vP+4*i+3}], v[{vO+4*h}:{vO+4*h+3}]")

    def static_tile(dst, tau):
        if tau < ntile0:
            a(f"s_add_u32 s{dst}, s{sA1}, {24*tau*8192}")
        else:
            a(f"s_add_u32 s{dst}, s{sA2}, {(tau-ntile0)*8*NS*8192}")

    slot_of_group = {n: n for n in range(G0)}
    issued = G0
    free = []
    treg = lambda tau: sQ + (tau % 8)
    got = set()

    def get_tile(tau):
        if tau not in got:
            got.add(tau)
            static_tile(treg(tau), tau)
    nissue = T - (G0 - G)
    issue_steps = set(2 * k + 1 for k in range(nissue))
    for n in range(n0):
        tau = n >> 1
        if n % 2 == 0 and tau >= ntile0:
            a(f"s_cmp_ge_u32 s{treg(tau)}, {LIMIT}")
            a("s_cbranch_scc1 L_loopend")
        a(f"s_waitcnt vmcnt({min(63, (issued-n-1)*8)})")
        if n % 2 == 0:
            qk(slot_of_group[n])
        else:
            a("s_nop 1")
            pv(slot_of_group[n])
        free.append(slot_of_group[n])
        if n in issue_steps:
            get_tile(issued >> 1)
            sl = free.pop(0)
            slot_of_group[issued] = sl
            issue_group(issued % 2 == 0, sl, treg(issued >> 1))
            issued += 1
        if n % 2 == 0:
            a("s_nop 7")
            softmax()
    assert issued == n0 + G
    sOf = sQ
    for i in range(F):
        get_tile(tau0 + i)
    for i in range(F):
        a(f"s_mov_b32 s{sT+i}, s{treg(tau0+i)}")
    for i in range(F):
        a(f"s_mov_b32 s{sOf+i}, s{sT+i}")
    static_tile(sT, tau0 + F)
    a(f"s_lshr_b32 s{sT}, s{sT}, 13")
    a(f"v_mov_b32 v{vE}, s{sT}")
    stamp(4)
    period_tiles = 1 if G == 2 else (G // 2 if G % 2 == 0 else G)
    slot_of = lambda n: slot_of_group[n0 + ((n - n0) % G)]
    W = 8 * G - 1
    empties = []

    def decode(idx):
        a("s_waitcnt lgkmcnt(0)")
        a(f"v_readfirstlane_b32 s{sT}, v{vE}")
        a("s_nop 0")
        a(f"s_cmp_eq_u32 s{sT}, -1")
        a(f"s_cbranch_scc1 L_empty{idx}")
        a(f"L_entryok{idx}:")
        a(f"s_min_u32 s{sT}, s{sT}, {TILES}")
        a(f"s_lshl_b32 s{sOf+F}, s{sT}, 13")
        empties.append(idx)

    def take_ticket():
        a(f"s_mov_b64 exec, s[{sPM}:{sPM+1}]")
        a(f"ds_add_rtn_u32 v{vTk}, v{vHd}, v{vOne}")
        a("s_mov_b64 exec, -1")

    def read_entry():
        a(f"s_mov_b64 exec, s[{sPM}:{sPM+1}]")
        a(f"v_lshlrev_b32 v{vTk}, 2, v{vTk}")
        a(f"ds_read_b32 v{vE}, v{vTk} offset:{L_QUE}")
        a(f"v_mov_b32 v{vAd}, v{vTk}")
        a("s_mov_b64 exec, -1")

    def ld(isk, slot, j, soff):
        if isk:
            a(f"buffer_load_dwordx4 {sreg(slot,j)}, v{vKoff}, s[{sK}:{sK+3}], s{soff} offen offset:{koff(j)} {kflags}")
        else:
            a(f"buffer_load_dwordx4 {sreg(slot,j)}, v{vVoff}, s[{sV}:{sV+3}], s{soff} offen offset:{voff(j)} {vflags}")

    a("L_loop:")
    for tl in range(period_tiles):
        n = n0 + 2 * tl
        a(f"s_cmp_ge_u32 s{sOf}, {LIMIT}")
        a("s_cbranch_scc1 L_loopend")
        if G % 2 == 0:
            decode(tl)
            take_ticket()
        else:
            take_ticket()
        m = n + G
        rel = (m >> 1) - (n >> 1)
        sl = slot_of(n)
        for j in range(8):
            a(f"s_waitcnt vmcnt({W})")
            c = "0" if j == 0 else f"v[{vS}:{vS+3}]"
            a(f"v_mfma_f32_16x16x32_bf16 v[{vS}:{vS+3}], {sreg(sl,j)}, v[{vQ+4*j}:{vQ+4*j+3}], {c}")
            ld(m % 2 == 0, sl, j, sOf + rel)
        a("s_nop 7")
        softmax()
        n += 1
        m = n + G
        rel = (m >> 1) - (n >> 1)
        sl = slot_of(n)
        if G % 2 == 0:
            a("s_waitcnt lgkmcnt(0)")
            read_entry()
        else:
            decode(tl)
            read_entry()
        for j in range(8):
            i, h = j >> 1, j & 1
            a(f"s_waitcnt vmcnt({W})")
            a(f"v_mfma_f32_16x16x32_bf16 v[{vO+4*h}:{vO+4*h+3}], {sreg(sl,j)}, v[{vP+4*i}:{vP+4*i+3}], v[{vO+4*h}:{vO+4*h+3}]")
            ld(m % 2 == 0, sl, j, sOf + rel)
        for i in range(F):
            a(f"s_mov_b32 s{sOf+i}, s{sOf+i+1}")
    a("s_branch L_loop")
    for idx in empties:
        a(f"L_empty{idx}:")
        if stamps:
            a(f"s_add_u32 s{sSt+4}, s{sSt+4}, 1")
        a(f"s_mov_b32 s{sSpin}, 0")
        a(f"L_emptyl{idx}:")
        a("s_sleep 1")
        a(f"ds_read_b32 v{vE}, v{vAd} offset:{L_QUE}")
        a("s_waitcnt lgkmcnt(0)")
        a(f"v_readfirstlane_b32 s{sT}, v{vE}")
        a("s_nop 0")
        a(f"s_cmp_eq_u32 s{sT}, -1")
        a(f"s_cbranch_scc0 L_entryok{idx}")
        if stamps:
            a(f"s_add_u32 s{sSt+5}, s{sSt+5}, 1")
        a(f"s_add_u32 s{sSpin}, s{sSpin}, 1")
        a(f"s_cmp_lt_u32 s{sSpin}, {MAXSPIN*16}")
        a(f"s_cbranch_scc1 L_emptyl{idx}")
        a(f"s_mov_b32 s{sT}, {TILES}")
        a(f"s_branch L_entryok{idx}")
    a("L_loopend:")
    a("s_waitcnt vmcnt(0)")
    a("s_branch L_combine")

    a("L_helper2:")
    t = vT
    if 'nomlp' in exp:
        a("s_branch L_feed")
    a(f"s_lshl_b32 s{sT}, s{sKap}, 9")
    a(f"s_lshl_b32 s{sT+1}, s{sC}, 4")
    a(f"s_add_u32 s{sT}, s{sT}, s{sT+1}")
    a(f"s_mul_i32 s{sT}, s{sT}, 896")
    srd(sR0, sWo, off_s=sT, size=16 * 896)
    a(f"v_lshlrev_b32 v{t}, 4, v{vLane}")
    wr = 144
    for r in range(16):
        a(f"s_mov_b32 s{sT+1}, {r*896}")
        a(f"buffer_load_dwordx4 v[{wr+4*r}:{wr+4*r+3}], v{t}, s[{sR0}:{sR0+3}], s{sT+1} offen {wflags}")
    a(f"s_mov_b32 s{sT}, 0x05040100")
    a(f"s_mov_b32 s{sT+1}, 0x07060302")
    a("s_waitcnt vmcnt(0)")
    for pr in range(8):
        r0 = wr + (2 * pr) * 4
        r1 = r0 + 4
        for d in range(4):
            o = vIW + pr * 8 + 2 * d
            a(f"v_perm_b32 v{o}, v{r1+d}, v{r0+d}, s{sT}")
            a(f"v_perm_b32 v{o+1}, v{r1+d}, v{r0+d}, s{sT+1}")
    sM = sQ + 2
    a(f"s_lshr_b32 s{sM}, s2, 3")
    a(f"s_cmp_eq_u32 s{sJ}, 4")
    a(f"s_cselect_b32 s{sM}, s{sM}, 255")
    a(f"s_cmp_lt_u32 s{sM}, {0 if 'nomlp2' in exp else 28}")
    a("s_cbranch_scc0 L_nomlp")
    a(f"s_lshl_b32 s{sT}, s{sM}, 7")
    if 'mlpc' in exp:
        a(f"s_mul_i32 s{sT}, s{sM}, 57344")
    a(f"s_sub_u32 s{sT+1}, {448*3584}, s{sT}")
    if 'guoob' in exp:
        a(f"s_mov_b32 s{sT+1}, 0")
    srd(sR0, sWg, off_s=sT, size_s=sT + 1)
    srd(sR1, sWu, off_s=sT, size_s=sT + 1)
    a(f"v_lshrrev_b32 v{t}, 3, v{vLane}")
    a(f"v_lshlrev_b32 v{t+1}, 2, v{t}")
    a(f"v_mul_u32_u24 v{t}, {128 if 'mlpc' in exp else 3584}, v{t}")
    a(f"v_and_b32 v{t+2}, 7, v{vLane}")
    a(f"v_lshl_add_u32 v{t}, v{t+2}, 4, v{t}")
    acc = vP
    for i in range(16):
        a(f"v_mov_b32 v{acc+i}, 0")
    a(f"s_mov_b32 s{sQ}, 0")
    a(f"s_mov_b32 s{sQ+1}, 0")
    a("L_gu:")
    for k in range(GUK):
        a(f"buffer_load_dwordx4 v[{vW+8*k}:{vW+8*k+3}], v{t}, s[{sR0}:{sR0+3}], s{sQ} offen {mflags}")
        a(f"buffer_load_dwordx4 v[{vW+8*k+4}:{vW+8*k+7}], v{t}, s[{sR1}:{sR1+3}], s{sQ} offen {mflags}")
        a(f"s_add_u32 s{sQ}, s{sQ}, {1024 if 'mlpc' in exp else 8*3584}")
    for k in range(GUK):
        a(f"ds_read_b32 v{vQ+k}, v{t+1} offset:{L_XN + 32*k}")
    a(f"v_add_u32 v{t+1}, {32*GUK}, v{t+1}")
    a("s_waitcnt lgkmcnt(0)")
    for k in range(GUK):
        a(f"s_waitcnt vmcnt({2*(GUK-1-k)})")
        a(f"v_lshrrev_b32 v{t+2}, 16, v{vQ+k}")
        for mtx in range(2):
            for d in range(4):
                w = vW + 8 * k + 4 * mtx + d
                a(f"v_dot2_f32_bf16 v{acc+8*mtx+2*d}, v{w}, v{t+2}, v{acc+8*mtx+2*d}")
                a(f"v_dot2_f32_bf16 v{acc+8*mtx+2*d+1}, v{w}, v{vQ+k}, v{acc+8*mtx+2*d+1}")
    a(f"s_add_u32 s{sQ+1}, s{sQ+1}, 1")
    a(f"s_cmp_lt_u32 s{sQ+1}, {1 if 'gu1' in exp else 56//GUK}")
    a("s_cbranch_scc1 L_gu")
    rem = transposed_reduce([acc + i for i in range(16)])
    a("s_nop 1")
    for r in rem:
        a(f"v_add_f32_dpp v{r}, v{r}, v{r} row_ror:8 row_mask:0xf bank_mask:0xf")
    for i in range(4):
        a(f"v_mov_b32 v{acc+4+i}, v{rem[i]}")
    a("s_nop 1")
    for i in range(4):
        a(f"v_permlane32_swap_b32 v{rem[i]}, v{acc+4+i}")
    a("s_nop 1")
    for i in range(4):
        bf16_round(rem[i], rem[i])
        bf16_round(acc + 4 + i, acc + 4 + i)
        a(f"v_max_f32 v{rem[i]}, 0, v{rem[i]}")
        a(f"v_mul_f32 v{rem[i]}, v{rem[i]}, v{acc+4+i}")
        bf16_round(rem[i], rem[i])
    a(f"v_and_b32 v{t}, 7, v{vLane}")
    a(f"v_lshlrev_b32 v{t}, 5, v{t}")
    a(f"v_bfe_u32 v{t+1}, v{vLane}, 4, 1")
    a(f"v_lshl_add_u32 v{t}, v{t+1}, 4, v{t}")
    a(f"s_mov_b32 s{sSave}, -1")
    a(f"s_mov_b32 s{sSave+1}, 0")
    a(f"s_mov_b64 exec, s[{sSave}:{sSave+1}]")
    a(f"ds_write_b128 v{t}, v[{rem[0]}:{rem[3]}] offset:{L_H}")
    a("s_mov_b64 exec, -1")
    a(f"s_mul_i32 s{sT}, s{sM}, {64*896}")
    srd(sR0, sWd, off_s=sT, size=(0 if 'dnoob' in exp else 64 * 896))
    a(f"v_lshlrev_b32 v{t}, 4, v{vLane}")
    a(f"v_mov_b32 v{t+1}, 0")
    for i in range(8):
        a(f"v_mov_b32 v{acc+i}, 0")
    a(f"s_mov_b32 s{sQ}, 0")
    a(f"s_mov_b32 s{sQ+1}, 0")
    a("s_waitcnt lgkmcnt(0)")
    a("L_dn:")
    for r in range(DNR):
        a(f"buffer_load_dwordx4 v[{vW+4*r}:{vW+4*r+3}], v{t}, s[{sR0}:{sR0+3}], s{sQ} offen {mflags}")
        a(f"s_add_u32 s{sQ}, s{sQ}, 896")
    for q4 in range(DNR // 4):
        a(f"ds_read_b128 v[{vQ+4*q4}:{vQ+4*q4+3}], v{t+1} offset:{L_H + 16*q4}")
    a(f"v_add_u32 v{t+1}, {4*DNR}, v{t+1}")
    a("s_waitcnt lgkmcnt(0)")
    for r in range(DNR):
        a(f"s_waitcnt vmcnt({DNR-1-r})")
        a(f"v_lshrrev_b32 v{t+2}, 16, v{vQ+r}")
        for d in range(4):
            w = vW + 4 * r + d
            a(f"v_dot2_f32_bf16 v{acc+2*d}, v{w}, v{t+2}, v{acc+2*d}")
            a(f"v_dot2_f32_bf16 v{acc+2*d+1}, v{w}, v{vQ+r}, v{acc+2*d+1}")
    a(f"s_add_u32 s{sQ+1}, s{sQ+1}, 1")
    a(f"s_cmp_lt_u32 s{sQ+1}, {1 if 'dn1' in exp else 64//DNR}")
    a("s_cbranch_scc1 L_dn")
    if 'nofbp' not in exp:
        publish48(acc, WS_FB, t, 28, sM)
    a("L_nomlp:")
    a(f"s_cmp_lt_u32 s{sCB}, {0 if 'nofbg' in exp else 21}")
    a("s_cbranch_scc0 L_feed")
    a(f"s_lshl_b32 s{sT}, s{sCB}, 7")
    a(f"s_add_u32 s{sT}, s{sT}, {WS_FB}")
    srd(sR0, sWs, off_s=sT, size=28 * 2688)
    a(f"v_lshrrev_b32 v{t}, 3, v{vLane}")
    a(f"v_and_b32 v{t+1}, 7, v{vLane}")
    a(f"v_lshlrev_b32 v{t+1}, 4, v{t+1}")
    fb = 144
    for k in range(4):
        a(f"v_add_u32 v{t+4}, {8*k}, v{t}")
        a(f"v_min_u32 v{t+4}, 27, v{t+4}")
        a(f"v_mul_u32_u24 v{t+4}, 2688, v{t+4}")
        a(f"v_add_u32 v{fb+16+k}, v{t+4}, v{t+1}")

    def fbloads():
        for k in range(4):
            a(f"buffer_load_dwordx4 v[{fb+4*k}:{fb+4*k+3}], v{fb+16+k}, s[{sR0}:{sR0+3}], 0 offen sc1")
    poll(fbloads, [fb + 4 * k + 3 for k in range(4)], t + 2, "L_pfb", sleep_mid)
    acc = vP
    a(f"v_cmp_gt_u32 vcc, 4, v{t}")
    a("s_nop 1")
    for c in range(3):
        a(f"v_cndmask_b32 v{acc+c}, 0, v{fb+12+c}, vcc")
        a(f"v_add_f32 v{acc+c}, v{acc+c}, v{fb+c}")
        a(f"v_add_f32 v{t+2}, v{fb+4+c}, v{fb+8+c}")
        a(f"v_add_f32 v{acc+c}, v{acc+c}, v{t+2}")
    a("s_nop 1")
    for c in range(3):
        a(f"v_add_f32_dpp v{acc+c}, v{acc+c}, v{acc+c} row_ror:8 row_mask:0xf bank_mask:0xf")
    for c in range(3):
        xrow_reduce(acc + c, t + 2, "v_add_f32")
    a(f"v_mov_b32 v{acc+3}, 0")
    a(f"ds_write_b128 v{t+1}, v[{acc}:{acc+3}] offset:{L_B}")
    a("s_waitcnt lgkmcnt(0)")
    a("L_feed:")
    stamp(4)
    if dyn:
        t = vT
        sF, sN = sQ, sQ + 1
        a(f"s_lshr_b32 s{sT}, s2, 3")
        a(f"s_lshl_b32 s{sT}, s{sT}, 8")
        a(f"s_add_u32 s{sT}, s{sT}, {WS_CT}")
        srd(sCT, sWs, off_s=sT, size=8)
        a(f"v_mov_b32 v{vZ}, 0")
        a(f"v_mov_b32 v{t}, {L_HEAD}")
        a(f"s_mov_b32 s{sF}, s{sA1}")
        if LA2 is not None:
            a(f"s_mov_b32 s{sQ+6}, {LA}")
        if hist:
            a(f"v_mov_b32 v26, 0")
            a(f"s_mov_b32 s{sQ+3}, 0")
        a(f"s_mov_b32 s{sSpin}, 0")
        a("L_feedloop:")
        a(f"ds_read_b32 v{t+1}, v{t}")
        a("s_waitcnt lgkmcnt(0)")
        a(f"v_readfirstlane_b32 s{sN}, v{t+1}")
        if hist:
            a(f"s_lshr_b32 s{sQ+2}, s{sN}, 2")
            a(f"s_cmp_gt_u32 s{sQ+2}, s{sQ+3}")
            a("s_cbranch_scc0 L_nohist")
            a(f"s_mov_b32 s{sQ+3}, s{sQ+2}")
            a(f"s_memrealtime s[{sQ+4}:{sQ+5}]")
            a("s_waitcnt lgkmcnt(0)")
            a(f"s_min_u32 s{sQ+2}, s{sQ+2}, 63")
            a(f"s_mov_b32 m0, s{sQ+2}")
            a(f"v_writelane_b32 v26, s{sQ+4}, m0")
            a("L_nohist:")
        if LA2 is None:
            a(f"s_add_u32 s{sN}, s{sN}, {LA}")
        else:
            a(f"s_add_u32 s{sN}, s{sN}, s{sQ+6}")
        a(f"s_sub_i32 s{sN}, s{sN}, s{sF}")
        a(f"s_cmp_gt_i32 s{sN}, 0")
        a("s_cbranch_scc1 L_feedgo")
        a(f"s_sleep {sleep_feed}")
        a(f"s_add_u32 s{sSpin}, s{sSpin}, 1")
        a(f"s_cmp_lt_u32 s{sSpin}, {MAXSPIN*16}")
        a("s_cbranch_scc1 L_feedloop")
        a("s_branch L_feedend")
        a("L_feedgo:")
        a(f"s_min_u32 s{sN}, s{sN}, 8")
        a("L_feedretry:")
        a("s_mov_b64 exec, 1")
        a(f"v_mov_b32 v{vA}, s{sN}")
        a(f"v_mov_b32 v{vA+1}, 0")
        a(f"buffer_atomic_add_x2 v[{vA}:{vA+1}], v{vZ}, s[{sCT}:{sCT+3}], 0 offen sc0")
        a("s_mov_b64 exec, -1")
        a("s_waitcnt vmcnt(0)")
        a(f"v_readfirstlane_b32 s{sT+1}, v{vA+1}")
        a(f"v_readfirstlane_b32 s{sT}, v{vA}")
        a(f"s_cmp_eq_u32 s{sT+1}, s{sTag}")
        a("s_cbranch_scc1 L_feedok")
        a(f"s_add_u32 s{sSpin}, s{sSpin}, 1")
        a(f"s_cmp_lt_u32 s{sSpin}, {MAXSPIN*16}")
        a("s_cbranch_scc1 L_feedretry")
        a(f"s_mov_b32 s{sT}, {TILES}")
        a("L_feedok:")
        if LA2 is not None:
            a(f"s_cmp_ge_u32 s{sT}, {TILES - LAX}")
            a(f"s_cselect_b32 s{sQ+6}, {LA2}, s{sQ+6}")
        a(f"s_add_u32 s{sT+2}, s{sT}, s{sN}")
        a(f"s_cmp_ge_u32 s{sT+2}, {TILES}")
        a(f"s_cselect_b32 s{sN}, 32, s{sN}")
        a(f"v_add_u32 v{t+2}, s{sT}, v{vLane}")
        a(f"v_add_u32 v{t+3}, s{sF}, v{vLane}")
        a(f"v_lshlrev_b32 v{t+3}, 2, v{t+3}")
        a(f"s_lshl_b64 s[{sSave}:{sSave+1}], 1, s{sN}")
        a(f"s_sub_u32 s{sSave}, s{sSave}, 1")
        a(f"s_subb_u32 s{sSave+1}, s{sSave+1}, 0")
        a(f"s_mov_b64 exec, s[{sSave}:{sSave+1}]")
        a(f"ds_write_b32 v{t+3}, v{t+2} offset:{L_QUE}")
        a("s_mov_b64 exec, -1")
        a(f"s_add_u32 s{sF}, s{sF}, s{sN}")
        a(f"s_cmp_lt_u32 s{sT+2}, {TILES}")
        a("s_cbranch_scc1 L_feedloop")
        a("L_feedend:")
        a("s_waitcnt lgkmcnt(0)")
        if hist:
            a(f"s_lshl_b32 s{sT}, s2, 8")
            a(f"s_add_u32 s{sT}, s{sT}, 0x180000")
            srd(sR0, sWs, off_s=sT, size=256)
            a(f"v_lshlrev_b32 v27, 2, v{vLane}")
            a(f"buffer_store_dword v26, v27, s[{sR0}:{sR0+3}], 0 offen")

    a("L_combine:")
    stamp(5)
    t = vT
    xrow_reduce(vL, t, "v_add_f32")
    a(f"v_bfe_u32 v{t}, v{vLane}, 3, 1")
    a(f"v_lshlrev_b32 v{t+1}, 3, v{t}")
    a(f"s_lshl_b32 s{sT}, s{sWave}, 4")
    a(f"v_add_u32 v{t+1}, s{sT}, v{t+1}")
    a(f"ds_write_b64 v{t+1}, v[{vM}:{vM+1}] offset:{L_ST}")
    a(f"v_lshlrev_b32 v{t+3}, 10, v{t}")
    a(f"v_lshrrev_b32 v{t+4}, 4, v{vLane}")
    a(f"v_lshl_add_u32 v{t+3}, v{t+4}, 7, v{t+3}")
    a(f"v_and_b32 v{t+4}, 7, v{vLane}")
    a(f"v_lshl_add_u32 v{t+3}, v{t+4}, 2, v{t+3}")
    a(f"s_lshl_b32 s{sT}, s{sWave}, 11")
    a(f"v_add_u32 v{t+3}, s{sT}, v{t+3}")
    for h in range(2):
        for ii in range(4):
            a(f"ds_write_b32 v{t+3}, v{vO+4*h+ii} offset:{L_RED + h*512 + ii*32}")
    a(f"s_lshl_b32 s{sT}, s{sKap}, 5")
    a(f"s_add_u32 s{sT}, s{sT}, s{sC}")
    a(f"s_lshl_b32 s{sT}, s{sT}, 13")
    a(f"s_add_u32 s{sT}, s{sT}, {WS_PG}")
    srd(sR0, sWs, off_s=sT, size=8192)
    a(f"s_mov_b32 s{sT+1}, 4096")
    a("s_waitcnt lgkmcnt(0)")
    a("s_barrier")
    st = vP
    a(f"v_mov_b32 v{t+1}, 0")
    for w in range(1, 4):
        a(f"ds_read_b128 v[{st+4*w}:{st+4*w+3}], v{t+1} offset:{L_ST+16*w}")
    a(f"v_lshlrev_b32 v{t}, 2, v0")
    ov = vQ + 8
    for h in range(2):
        for w in range(1, 4):
            a(f"ds_read_b32 v{ov+3*h+w-1}, v{t} offset:{L_RED + w*2048 + h*1024}")
    a(f"v_lshlrev_b32 v{t}, 4, v0")
    a("s_waitcnt lgkmcnt(6)")
    g = vO
    for h in range(2):
        M = g + 4 * h + 1
        Lr = g + 4 * h + 2
        a(f"v_max3_f32 v{M}, v{st+4+2*h}, v{st+8+2*h}, v{st+12+2*h}")
        for w in range(1, 4):
            a(f"v_sub_f32 v{vQ+3*h+w-1}, v{st+4*w+2*h}, v{M}")
        for w in range(1, 4):
            a(f"v_exp_f32 v{vQ+3*h+w-1}, v{vQ+3*h+w-1}")
        a("s_nop 0")
        a(f"v_mul_f32 v{Lr}, v{vQ+3*h}, v{st+4+2*h+1}")
        for w in range(2, 4):
            a(f"v_fmac_f32 v{Lr}, v{vQ+3*h+w-1}, v{st+4*w+2*h+1}")
        a(f"v_mov_b32 v{g+4*h+3}, s{sTag}")
    a("s_waitcnt lgkmcnt(0)")
    for h in range(2):
        a(f"v_mul_f32 v{g+4*h}, v{vQ+3*h}, v{ov+3*h}")
        for w in range(2, 4):
            a(f"v_fmac_f32 v{g+4*h}, v{vQ+3*h+w-1}, v{ov+3*h+w-1}")
    a(f"buffer_store_dwordx4 v[{g}:{g+3}], v{t}, s[{sR0}:{sR0+3}], 0 offen sc1")
    a(f"buffer_store_dwordx4 v[{g+4}:{g+7}], v{t}, s[{sR0}:{sR0+3}], s{sT+1} offen sc1")
    stamp(6)
    if 'notail' in exp:
        a("s_branch L_fin")
    a(f"s_cmp_eq_u32 s{sWave}, 0")
    a("s_cbranch_scc0 L_s1done")
    a(f"s_lshl_b32 s{sT}, s{sKap}, 18")
    a(f"s_lshl_b32 s{sT+1}, s{sC}, 8")
    a(f"s_add_u32 s{sT}, s{sT}, s{sT+1}")
    a(f"s_add_u32 s{sT}, s{sT}, {WS_PG}")
    srd(sR0, sWs, off_s=sT, size=32 * 8192)
    a(f"v_lshrrev_b32 v{t}, 4, v{vLane}")
    a(f"v_lshlrev_b32 v{t}, 13, v{t}")
    a(f"v_and_b32 v{t+1}, 15, v{vLane}")
    a(f"v_lshl_add_u32 v{t}, v{t+1}, 4, v{t}")
    pg = 160

    for k in range(8):
        a(f"v_add_u32 v{pg+32+k}, {k*32768}, v{t}")

    def pload(k):
        a(f"buffer_load_dwordx4 v[{pg+4*k}:{pg+4*k+3}], v{pg+32+k}, s[{sR0}:{sR0+3}], 0 offen sc1")
    poll_masked(8, pload, lambda k: [pg + 4 * k + 3], t + 2, "L_pp", sleep_tail)
    stamp(7)
    a(f"v_max3_f32 v{t+1}, v{pg+1}, v{pg+5}, v{pg+9}")
    a(f"v_max3_f32 v{t+1}, v{t+1}, v{pg+13}, v{pg+17}")
    a(f"v_max3_f32 v{t+1}, v{t+1}, v{pg+21}, v{pg+25}")
    a(f"v_max_f32 v{t+1}, v{t+1}, v{pg+29}")
    xrow_reduce(t + 1, t + 2, "v_max_f32")
    for k in range(8):
        a(f"v_sub_f32 v{pg+4*k+1}, v{pg+4*k+1}, v{t+1}")
    for k in range(8):
        a(f"v_exp_f32 v{pg+4*k+1}, v{pg+4*k+1}")
    a("s_nop 0")
    a(f"v_mul_f32 v{t+3}, v{pg+1}, v{pg}")
    a(f"v_mul_f32 v{t+4}, v{pg+1}, v{pg+2}")
    for k in range(1, 8):
        a(f"v_fmac_f32 v{t+3}, v{pg+4*k+1}, v{pg+4*k}")
        a(f"v_fmac_f32 v{t+4}, v{pg+4*k+1}, v{pg+4*k+2}")
    xrow_reduce(t + 3, t + 2, "v_add_f32")
    xrow_reduce(t + 4, t + 2, "v_add_f32")
    a(f"v_rcp_f32 v{t+5}, v{t+4}")
    a("s_nop 0")
    a(f"v_mul_f32 v{t+6}, v{t+3}, v{t+5}")
    a(f"v_fma_f32 v{t+3}, -v{t+6}, v{t+4}, v{t+3}")
    a(f"v_fma_f32 v{t+3}, v{t+3}, v{t+5}, v{t+6}")
    a("s_nop 1")
    a(f"v_mov_b32_dpp v{t+4}, v{t+3} row_shl:1 row_mask:0xf bank_mask:0xf")
    a("s_nop 0")
    a(f"v_cvt_pk_bf16_f32 v{t+3}, v{t+3}, v{t+4}")
    a("s_nop 0")
    for i in range(8):
        a(f"v_readlane_b32 s{sQ+i}, v{t+3}, {2*i}")
    a("s_nop 1")
    acc = vP
    for pr in range(8):
        for c in range(8):
            c0 = "0" if pr == 0 else f"v{acc+c}"
            a(f"v_dot2_f32_bf16 v{acc+c}, v{vIW+pr*8+c}, s{sQ+pr}, {c0}")
    publish48(acc, WS_FA, t, 256, 2)
    a("L_s1done:")
    stamp(8)
    t = vT
    a(f"s_cmp_lt_u32 s{sCB}, 21")
    a("s_cbranch_scc0 L_fin")
    a("s_barrier")
    a(f"s_lshl_b32 s{sT}, s{sCB}, 7")
    a(f"s_add_u32 s{sT}, s{sT}, {WS_FA}")
    srd(sR0, sWs, off_s=sT, size=256 * 2688)
    a(f"v_lshrrev_b32 v{t}, 3, v0")
    a(f"v_and_b32 v{t+1}, 7, v{t}")
    a(f"v_lshrrev_b32 v{t}, 3, v{t}")
    a(f"v_lshl_add_u32 v{t}, v{t}, 6, v{t+1}")
    a(f"v_mul_u32_u24 v{t}, 2688, v{t}")
    a(f"v_and_b32 v{t+1}, 7, v{vLane}")
    a(f"v_lshlrev_b32 v{t+1}, 4, v{t+1}")
    a(f"v_add_u32 v{t}, v{t}, v{t+1}")
    fa = vQ

    for k in range(8):
        a(f"v_add_u32 v{vW+k}, {k*8*2688}, v{t}")

    def faload(k):
        a(f"buffer_load_dwordx4 v[{fa+4*k}:{fa+4*k+3}], v{vW+k}, s[{sR0}:{sR0+3}], 0 offen sc1")
    a(f"s_mul_i32 s{sT+3}, s{sCB}, 37")
    a(f"s_lshr_b32 s{sT+3}, s{sT+3}, 8")
    a(f"s_mul_i32 s{sT+4}, s{sT+3}, 7")
    a(f"s_sub_u32 s{sT+4}, s{sCB}, s{sT+4}")
    a(f"s_lshl_b32 s{sT+4}, s{sT+4}, 6")
    a(f"s_mul_i32 s{sT+5}, s{sT+3}, 3")
    a(f"s_add_u32 s{sT+4}, s{sT+4}, s{sT+5}")
    a(f"v_and_b32 v{t+4}, 7, v{vLane}")
    a(f"v_lshlrev_b32 v{t+4}, 3, v{t+4}")
    a(f"v_lshrrev_b32 v{t+5}, 3, v{vLane}")
    a(f"v_add_u32 v{t+4}, v{t+4}, v{t+5}")
    a(f"v_add_u32 v{t+4}, s{sT+4}, v{t+4}")
    a(f"v_lshlrev_b32 v{t+4}, 1, v{t+4}")
    a(f"v_add_u32 v{t+6}, s{sT+5}, v{t+5}")
    a(f"v_cmp_gt_u32 vcc, 8, v{t+6}")
    a(f"v_cmp_gt_u32 s[{sSave}:{sSave+1}], 3, v{t+5}")
    a("s_nop 1")
    a(f"s_and_b64 s[{sSave}:{sSave+1}], s[{sSave}:{sSave+1}], vcc")
    srd(sR1, sX, size=896)
    a(f"buffer_load_ushort v{vP+8}, v{t+4}, s[{sR1}:{sR1+3}], 0 offen")
    poll_masked(8, faload, lambda k: [fa + 4 * k + 3], t + 2, "L_pfa", sleep_tail)
    stamp(9)
    acc = vP
    for c in range(3):
        a(f"v_add_f32 v{acc+c}, v{fa+c}, v{fa+4+c}")
        a(f"v_add_f32 v{t+2}, v{fa+8+c}, v{fa+12+c}")
        a(f"v_add_f32 v{acc+c}, v{acc+c}, v{t+2}")
        a(f"v_add_f32 v{t+2}, v{fa+16+c}, v{fa+20+c}")
        a(f"v_add_f32 v{t+3}, v{fa+24+c}, v{fa+28+c}")
        a(f"v_add_f32 v{t+2}, v{t+2}, v{t+3}")
        a(f"v_add_f32 v{acc+c}, v{acc+c}, v{t+2}")
    a("s_nop 1")
    for c in range(3):
        a(f"v_add_f32_dpp v{acc+c}, v{acc+c}, v{acc+c} row_ror:8 row_mask:0xf bank_mask:0xf")
    for c in range(3):
        xrow_reduce(acc + c, t + 2, "v_add_f32")
    a(f"v_mov_b32 v{acc+3}, 0")
    a(f"s_lshl_b32 s{sT}, s{sWave}, 7")
    a(f"v_add_u32 v{t+2}, s{sT}, v{t+1}")
    a(f"ds_write_b128 v{t+2}, v[{acc}:{acc+3}] offset:{L_FIN}")
    srd(sR1, sOut, size=896)
    a("s_waitcnt lgkmcnt(0)")
    a("s_barrier")
    a(f"s_cmp_eq_u32 s{sWave}, 0")
    a("s_cbranch_scc0 L_fin")
    a(f"v_min_u32 v{t+5}, 3, v{t+5}")
    a(f"v_lshl_add_u32 v{t+1}, v{t+5}, 2, v{t+1}")
    for w in range(4):
        a(f"ds_read_b32 v{acc+w}, v{t+1} offset:{L_FIN+128*w}")
    a(f"ds_read_b32 v{acc+4}, v{t+1} offset:{L_B}")
    a("s_waitcnt vmcnt(0) lgkmcnt(0)")
    a(f"v_add_f32 v{acc}, v{acc}, v{acc+1}")
    a(f"v_add_f32 v{acc+2}, v{acc+2}, v{acc+3}")
    a(f"v_add_f32 v{acc}, v{acc}, v{acc+2}")
    bf16_round(acc, acc)
    bf16_round(acc + 4, acc + 4)
    a(f"v_lshlrev_b32 v{acc+8}, 16, v{acc+8}")
    a(f"v_add_f32 v{acc}, v{acc+8}, v{acc}")
    bf16_round(acc, acc)
    a(f"v_add_f32 v{acc}, v{acc}, v{acc+4}")
    a(f"v_cvt_pk_bf16_f32 v{acc}, v{acc}, v{acc}")
    a(f"s_mov_b64 exec, s[{sSave}:{sSave+1}]")
    a(f"buffer_store_short v{acc}, v{t+4}, s[{sR1}:{sR1+3}], 0 offen")
    a("s_mov_b64 exec, -1")
    a(f"s_cmp_eq_u32 s{sCB}, 0")
    a("s_cbranch_scc0 L_fin")
    srd(sR0, sWs, off_imm=WS_EPOCH, size=4)
    a(f"v_mov_b32 v{t}, 0")
    a(f"v_mov_b32 v{t+1}, s{sTag}")
    a("s_mov_b64 exec, 1")
    a(f"buffer_store_dword v{t+1}, v{t}, s[{sR0}:{sR0+3}], 0 offen")
    a("s_mov_b64 exec, -1")
    a("L_fin:")
    if stamps:
        stamp(10)
        a("s_waitcnt lgkmcnt(0)")
        a(f"s_lshl_b32 s{sT}, s2, 2")
        a(f"s_add_u32 s{sT}, s{sT}, s{sWave}")
        a(f"s_lshl_b32 s{sT}, s{sT}, 6")
        a(f"s_add_u32 s{sT}, s{sT}, {WS_STAMP}")
        srd(sR0, sWs, off_s=sT, size=64)
        a("v_mov_b32 v28, 0")
        a("s_mov_b64 exec, 1")
        for i in range(11):
            a(f"v_mov_b32 v27, s{sSt+2*i}")
            a(f"buffer_store_dword v27, v28, s[{sR0}:{sR0+3}], 0 offen offset:{4*i}")
            a("s_nop 1")
        a(f"v_mov_b32 v27, s{sSt+5}")
        a(f"buffer_store_dword v27, v28, s[{sR0}:{sR0+3}], 0 offen offset:44")
        a("s_nop 1")
        a(f"s_getreg_b32 s{sT}, hwreg(HW_REG_XCC_ID)")
        a(f"v_mov_b32 v27, s{sT}")
        a(f"buffer_store_dword v27, v28, s[{sR0}:{sR0+3}], 0 offen offset:60")
    a("L_end:")
    a("s_endpgm")

    head = HEADER + f"; @launch grid=(256,1,1) block=(256,1,1) lds={LDS_BYTES}\n" + DOC
    head += '.amdgcn_target "amdgcn-amd-amdhsa--gfx950"\n.text\n'
    head += f".globl {KN}_kernel\n.p2align 8\n.type {KN}_kernel,@function\n"
    tail = f""".section .rodata,"a"
.p2align 6
.amdhsa_kernel {KN}_kernel
  .amdhsa_next_free_vgpr 512
  .amdhsa_next_free_sgpr 102
  .amdhsa_accum_offset 256
  .amdhsa_group_segment_fixed_size 0
  .amdhsa_kernarg_size 96
  .amdhsa_user_sgpr_count 2
  .amdhsa_user_sgpr_kernarg_segment_ptr 1
  .amdhsa_system_sgpr_workgroup_id_x 1
.end_amdhsa_kernel
"""
    return head + a.text() + tail


if __name__ == "__main__":
    import argparse
    ap = argparse.ArgumentParser()
    ap.add_argument("-o", default="k.s")
    ap.add_argument("--G0", type=int, default=6)
    ap.add_argument("--G", type=int, default=2)
    ap.add_argument("--streamers", default="1,2")
    ap.add_argument("--stamps", action="store_true")
    ap.add_argument("--pfi", type=int, default=None)
    ap.add_argument("--a0mode", default="issue")
    ap.add_argument("--exp", default="")
    ap.add_argument("--static", action="store_true")
    ap.add_argument("--sleep_mid", type=int, default=16)
    ap.add_argument("--sleep_tail", type=int, default=1)
    ap.add_argument("--sleep_q", type=int, default=1)
    ap.add_argument("--NPRE", type=int, default=64)
    ap.add_argument("--NPM", type=int, default=48)
    ap.add_argument("--codepf", action="store_true")
    ap.add_argument("--qmask", action="store_true")
    ap.add_argument("--hist", action="store_true")
    ap.add_argument("--pre", type=int, default=0)
    ap.add_argument("--LA2", type=int, default=None)
    ap.add_argument("--LAX", type=int, default=48)
    ap.add_argument("--mflags", default=None)
    ap.add_argument("--GUK", type=int, default=14)
    ap.add_argument("--DNR", type=int, default=16)
    ap.add_argument("--wflags", default="nt")
    ap.add_argument("--noroll", action="store_true")
    ap.add_argument("--LA", type=int, default=6)
    args = ap.parse_args()
    s = gen(G=args.G, G0=args.G0, streamers=tuple(int(x) for x in args.streamers.split(",")), stamps=args.stamps, pfi=args.pfi,
            a0mode=args.a0mode, exp=args.exp, dyn=not args.static, sleep_mid=args.sleep_mid, sleep_tail=args.sleep_tail, sleep_q=args.sleep_q, NPRE=args.NPRE, NPM=args.NPM, codepf=args.codepf, qmask=args.qmask, hist=args.hist, pre_groups=args.pre, LA2=args.LA2, LAX=args.LAX, mflags=args.mflags, GUK=args.GUK, DNR=args.DNR, LA=args.LA, wflags=args.wflags, roll=not args.noroll)
    open(args.o, "w").write(s)
```

```python
import sys, math, struct

KN = "parallel_sum__gqa_block_cached__glu_gated_reglu__decode"

HEADER = """; Kernarg layout for this problem (96 bytes, ptrs only, base s[0:1]):
"""

DOC = '''; ---------------------------------------------------------------------------------------------
;  Cross-workgroup hand-offs use self-validating {data, tag} granules in d_ws (sc1 stores / sc1 loads);
; ---------------------------------------------------------------------------------------------
'''

WS_EPOCH = 0x0
WS_CT = 0x8000
WS_QG = 0x10000
WS_GG = 0x20000
WS_FA = 0x40000
WS_STAMP = 0x100000
WS_PG = 0x200000
WS_FB = 0x400000

L_Q = 0x0000
L_ST = 0x0410
L_FIN = 0x0480
L_B = 0x0780
L_H = 0x0680
L_XN = 0x0800
L_RED = 0x1000
L_HEAD = 0x0400
L_FLQ = 0x0404
L_QUE = 0x3000
LDS_BYTES = 0x4800
EMPTY = 0xFFFFFFFF

TILES = 1024
LIMIT = TILES * 8192
SC = math.log2(math.e) / 16.0
MAXSPIN = 1 << 16


def f2u(f):
    return struct.unpack("<I", struct.pack("<f", f))[0]


class A:
    def __init__(self):
        self.L = []
        self.n = 0

    def __call__(self, s):
        for line in s.strip("\n").split("\n"):
            line = line.strip()
            self.L.append(line if line.endswith(":") else "  " + line)

    def label(self, p="L"):
        self.n += 1
        return f"{p}_{self.n}"

    def text(self):
        return "\n".join(self.L) + "\n"


def gen(G=2, G0=6, streamers=(1, 2), stamps=False, kflags="nt", vflags="nt", sleep_mid=16, sleep_q=1, sleep_tail=1,
        wflags="", a0mode="issue", prio=True, pfi=None, exp="", dyn=True, NPRE=64, LA=6, sleep_feed=4, roll=True, NPM=48, GUK=14, DNR=16, codepf=False, qmask=False, hist=False, pre_groups=0, mflags=None, LA2=None, LAX=48):
    a = A()
    if mflags is None:
        mflags = wflags
    assert G <= G0 <= 13 and (G0 <= 7 or pfi is not None)
    NS = len(streamers)
    sX, sKp, sVp, sWq, sWo, sWg, sWu, sWd, sOut, sDbg, sWs = 4, 6, 8, 10, 12, 16, 18, 20, 22, 24, 26
    sK, sV, sR0, sR1 = 28, 32, 36, 40
    sKap, sC, sWave, sTag, sE = 44, 45, 46, 47, 48
    sT = 49
    sQ = 56
    sPM = 64
    sSpin = 66
    sCB = 67
    sSave = 68
    sSt = 70
    sA1, sA2 = 92, 93
    sC1 = 94
    sJ = 95
    sCT = 96
    sNx, sCur = 100, 101
    vLane, vKoff, vVoff = 1, 2, 3
    vMask = 4
    vS = 8
    vO = 12
    vM, vL = 20, 21
    vT = 22
    vQ = 32
    vP = 64
    vIW = 80
    vW = 144
    vX = 8
    vA = 30
    vZ = 29
    vE, vAd, vTk, vOne, vHd = 80, 81, 82, 83, 84

    def stamp(i):
        if stamps:
            a(f"s_memrealtime s[{sSt+2*i}:{sSt+2*i+1}]")

    def srd(s, base, off_s=None, off_imm=0, size=None, size_s=None):
        if off_s is not None:
            a(f"s_add_u32 s{s}, s{base}, s{off_s}")
            a(f"s_addc_u32 s{s+1}, s{base+1}, 0")
        elif off_imm:
            a(f"s_add_u32 s{s}, s{base}, {off_imm}")
            a(f"s_addc_u32 s{s+1}, s{base+1}, 0")
        else:
            a(f"s_mov_b32 s{s}, s{base}")
            a(f"s_mov_b32 s{s+1}, s{base+1}")
        if size_s is not None:
            a(f"s_mov_b32 s{s+2}, s{size_s}")
        else:
            a(f"s_mov_b32 s{s+2}, {size}")
        a(f"s_mov_b32 s{s+3}, 0x00020000")

    def xrow_reduce(v, t, op):
        a(f"v_mov_b32 v{t}, v{v}")
        a("s_nop 1")
        a(f"v_permlane16_swap_b32 v{v}, v{t}")
        a("s_nop 1")
        a(f"{op} v{v}, v{v}, v{t}")
        a(f"v_mov_b32 v{t}, v{v}")
        a("s_nop 1")
        a(f"v_permlane32_swap_b32 v{v}, v{t}")
        a("s_nop 1")
        a(f"{op} v{v}, v{v}, v{t}")

    def row16_reduce(regs, op="v_add_f32"):
        for ctl in ("quad_perm:[1,0,3,2]", "quad_perm:[2,3,0,1]", "row_half_mirror", "row_mirror"):
            a("s_nop 1")
            for r in regs:
                a(f"{op}_dpp v{r}, v{r}, v{r} {ctl} row_mask:0xf bank_mask:0xf")

    def transposed_reduce(regs):
        n = len(regs) // 2
        a("s_nop 1")
        for i in range(n):
            a(f"v_permlane32_swap_b32 v{regs[i]}, v{regs[i+n]}")
        a("s_nop 1")
        for i in range(n):
            a(f"v_add_f32 v{regs[i]}, v{regs[i]}, v{regs[i+n]}")
        regs = regs[:n]
        n = n // 2
        a("s_nop 1")
        for i in range(n):
            a(f"v_permlane16_swap_b32 v{regs[i]}, v{regs[i+n]}")
        a("s_nop 1")
        for i in range(n):
            a(f"v_add_f32 v{regs[i]}, v{regs[i]}, v{regs[i+n]}")
        return regs[:n]

    def bf16_round(dst, src):
        a(f"v_cvt_pk_bf16_f32 v{dst}, v{src}, v{src}")
        a(f"v_lshlrev_b32 v{dst}, 16, v{dst}")

    def poll(loads, tagregs, tmp, lbl, sleep):
        L = a.label(lbl)
        Lok = a.label(lbl + "ok")
        a(f"s_mov_b32 s{sSpin}, 0")
        a(f"{L}:")
        loads()
        a("s_waitcnt vmcnt(0)")
        first = True
        for r in tagregs:
            if first:
                a(f"v_xor_b32 v{tmp}, s{sTag}, v{r}")
                first = False
            else:
                a(f"v_xor_b32 v{tmp+1}, s{sTag}, v{r}")
                a(f"v_or_b32 v{tmp}, v{tmp}, v{tmp+1}")
        a(f"v_cmp_ne_u32 vcc, 0, v{tmp}")
        a("s_nop 4")
        a(f"s_cbranch_vccz {Lok}")
        a(f"s_add_u32 s{sSpin}, s{sSpin}, 1")
        a(f"s_cmp_lt_u32 s{sSpin}, {MAXSPIN}")
        if sleep:
            a(f"s_sleep {sleep}")
        a(f"s_cbranch_scc1 {L}")
        a(f"{Lok}:")

    def poll_masked(nk, load_k, tags_k, tmp, lbl, sleep):
        L = a.label(lbl)
        Lok = a.label(lbl + "ok")
        sPend = sPM
        a(f"s_mov_b32 s{sSpin}, 0")
        a(f"s_mov_b32 s{sPend}, {(1 << nk) - 1}")
        a(f"{L}:")
        for k in range(nk):
            sk = a.label(lbl + "s")
            a(f"s_bitcmp1_b32 s{sPend}, {k}")
            a(f"s_cbranch_scc0 {sk}")
            load_k(k)
            a(f"{sk}:")
        a("s_waitcnt vmcnt(0)")
        for k in range(nk):
            tg = tags_k(k)
            if len(tg) == 1:
                a(f"v_cmp_ne_u32 vcc, s{sTag}, v{tg[0]}")
            else:
                a(f"v_xor_b32 v{tmp}, s{sTag}, v{tg[0]}")
                for r in tg[1:]:
                    a(f"v_xor_b32 v{tmp+1}, s{sTag}, v{r}")
                    a(f"v_or_b32 v{tmp}, v{tmp}, v{tmp+1}")
                a(f"v_cmp_ne_u32 vcc, 0, v{tmp}")
            a("s_nop 0")
            a("s_cmp_eq_u64 vcc, 0")
            a(f"s_cselect_b32 s{sPend+1}, {hex((~(1 << k)) & 0xffffffff)}, -1")
            a(f"s_and_b32 s{sPend}, s{sPend}, s{sPend+1}")
        a(f"s_cmp_eq_u32 s{sPend}, 0")
        a(f"s_cbranch_scc1 {Lok}")
        a(f"s_add_u32 s{sSpin}, s{sSpin}, 1")
        a(f"s_cmp_lt_u32 s{sSpin}, {MAXSPIN}")
        if sleep:
            a(f"s_sleep {sleep}")
        a(f"s_cbranch_scc1 {L}")
        a(f"{Lok}:")

    def publish48(acc, ws_off, t, nprod, sprod):
        q = vW
        for g in range(3):
            for i in range(3):
                k = 3 * g + i
                if k < 8:
                    a(f"v_mov_b32 v{q+4*g+i}, v{acc+k}")
                else:
                    a(f"v_mov_b32 v{q+4*g+i}, 0")
            a(f"v_mov_b32 v{q+4*g+3}, s{sTag}")
        a(f"s_mul_i32 s{sT}, s{sprod}, 2688")
        a(f"s_add_u32 s{sT}, s{sT}, {ws_off}")
        srd(sR0, sWs, off_s=sT, size=2688)
        a(f"v_lshlrev_b32 v{t}, 4, v{vLane}")
        a(f"s_mov_b32 s{sSave}, -1")
        a(f"s_mov_b32 s{sSave+1}, 0x00ffffff")
        a(f"s_mov_b64 exec, s[{sSave}:{sSave+1}]")
        for g in range(3):
            a(f"buffer_store_dwordx4 v[{q+4*g}:{q+4*g+3}], v{t}, s[{sR0}:{sR0+3}], 0 offen offset:{896*g} sc1")
        a("s_mov_b64 exec, -1")

    ntile0 = (G0 + 1) // 2
    T = 2 * (G0 - G)
    n0 = T
    tau0 = n0 // 2
    F = (G + 1) // 2
    NSTAT = max(tau0 + F + 1, ntile0)
    S0 = 24 * ntile0 + (NSTAT - ntile0) * 8 * NS
    if not dyn:
        NPRE = (TILES - S0 + 7) // 8 + 16
    if not dyn:
        NPM = NPRE
    NPM = min(NPM, NPRE)
    CT0 = S0 + 8 * NPRE
    CT0M = S0 + 8 * NPM + 7 * (NPRE - NPM)

    a(f"{KN}_kernel:")
    a("s_cmp_ge_u32 s2, 256")
    a("s_cbranch_scc1 L_end")
    if stamps:
        for i in range(22):
            a(f"s_mov_b32 s{sSt+i}, 0")
    stamp(0)
    a("s_load_dwordx16 s[4:19], s[0:1], 0")
    a("s_load_dwordx8 s[20:27], s[0:1], 64")
    a(f"v_and_b32 v{vLane}, 63, v0")
    a(f"v_lshrrev_b32 v{vT}, 6, v0")
    a(f"s_bfe_u32 s{sKap}, s2, 0x30003")
    a(f"s_lshr_b32 s{sC}, s2, 6")
    a(f"s_lshl_b32 s{sC}, s{sC}, 3")
    a(f"s_and_b32 s{sJ}, s2, 7")
    a(f"s_add_u32 s{sC}, s{sC}, s{sJ}")
    a(f"v_readfirstlane_b32 s{sWave}, v{vT}")
    a(f"s_cmp_eq_u32 s{sWave}, 0")
    a("s_cbranch_scc1 L_helper1")
    if codepf:
        a(f"s_cmp_eq_u32 s{sWave}, 3")
        a("s_cbranch_scc0 L_nocpf")
        a(f"s_getpc_b64 s[{sR0}:{sR0+1}]")
        a("L_pcref:")
        a(f"s_sub_u32 s{sR0}, s{sR0}, L_pcref-{KN}_kernel")
        a(f"s_subb_u32 s{sR0+1}, s{sR0+1}, 0")
        a(f"v_lshlrev_b32 v{vT+3}, 7, v{vLane}")
        for k in range(4):
            a(f"v_add_u32 v{vT+4}, {k*8192}, v{vT+3}")
            a(f"v_min_u32 v{vT+4}, L_end-{KN}_kernel, v{vT+4}")
            a(f"global_load_dword v{vT+5}, v{vT+4}, s[{sR0}:{sR0+1}]")
        a("L_nocpf:")
    a(f"v_and_b32 v{vT+1}, 15, v{vLane}")
    a(f"v_lshrrev_b32 v{vT+2}, 4, v{vLane}")
    a(f"v_lshlrev_b32 v{vKoff}, 9, v{vT+1}")
    a(f"v_lshl_add_u32 v{vKoff}, v{vT+2}, 4, v{vKoff}")
    a(f"v_lshlrev_b32 v{vVoff}, 11, v{vT+2}")
    a(f"v_lshl_add_u32 v{vVoff}, v{vT+1}, 4, v{vVoff}")
    a(f"s_lshl_b32 s{sT}, s{sKap}, 25")
    a(f"s_lshr_b32 s{sT+1}, s2, 6")
    a(f"s_lshl_b32 s{sT+1}, s{sT+1}, 23")
    a(f"s_add_u32 s{sT}, s{sT}, s{sT+1}")
    a(f"s_mul_i32 s{sA1}, s{sJ}, 3")
    a(f"s_add_u32 s{sA1}, s{sA1}, s{sWave}")
    a(f"s_sub_u32 s{sA1}, s{sA1}, 1")
    a(f"s_lshl_b32 s{sA1}, s{sA1}, 13")
    a(f"s_mov_b32 s{sQ}, s{sA1}")
    a("s_waitcnt lgkmcnt(0)")
    a(f"s_load_dword s{sE}, s[{sWs}:{sWs+1}], {WS_EPOCH}")
    srd(sK, sKp, off_s=sT, size=LIMIT)
    srd(sV, sVp, off_s=sT, size=LIMIT)
    if a0mode != "none" and pre_groups == 0:
        a("s_barrier")

    koff = lambda j: j * 64
    voff = lambda j: (j >> 1) * 512 + (j & 1) * 256

    def sreg(slot, j):
        if 'vslots' in exp:
            r = 96 + slot * 32 + j * 4
            return f"v[{r}:{r+3}]"
        if slot < 8:
            r = slot * 32 + j * 4
            return f"a[{r}:{r+3}]"
        r = 96 + (slot - 8) * 32 + j * 4
        return f"v[{r}:{r+3}]"

    def issue_group(n_is_k, slot, soff):
        for j in range(8):
            if n_is_k:
                a(f"buffer_load_dwordx4 {sreg(slot,j)}, v{vKoff}, s[{sK}:{sK+3}], s{soff} offen offset:{koff(j)} {kflags}")
            else:
                a(f"buffer_load_dwordx4 {sreg(slot,j)}, v{vVoff}, s[{sV}:{sV+3}], s{soff} offen offset:{voff(j)} {vflags}")

    for n in range(G0):
        if n % 2 == 0 and n > 0:
            a(f"s_add_u32 s{sQ}, s{sQ}, {24*8192}")
        issue_group(n % 2 == 0, n, sQ)
        if pre_groups and n == pre_groups - 1:
            a("s_barrier")
        if pfi is not None and n >= pfi and n < G0 - 1:
            a(f"s_waitcnt vmcnt({8*pfi})")
    stamp(1)
    a(f"v_and_b32 v{vT+6}, 1, v{vLane}")
    a(f"v_cmp_eq_u32 vcc, 1, v{vT+6}")
    a(f"v_mov_b32 v{vT+4}, 0xffff")
    a(f"v_mov_b32 v{vT+5}, 0xffff0000")
    a(f"v_cndmask_b32 v{vT+4}, v{vT+4}, v{vT+5}, vcc")
    a(f"v_bfe_u32 v{vT+6}, v{vLane}, 1, 2")
    for j in range(4):
        a(f"v_cmp_eq_u32 vcc, {j}, v{vT+6}")
        a("s_nop 1")
        a(f"v_cndmask_b32 v{vMask+j}, 0, v{vT+4}, vcc")
    a(f"v_mov_b32 v{vM}, {hex(f2u(-1e30))}")
    a(f"v_mov_b32 v{vL}, 0")
    for i in range(8):
        a(f"v_mov_b32 v{vO+i}, 0")
    smask = sum(1 << w for w in streamers)
    a(f"s_lshr_b32 s{sT}, {smask}, s{sWave}")
    a(f"s_and_b32 s{sPM}, s{sT}, 1")
    a(f"s_mov_b32 s{sPM+1}, 0")
    a(f"s_lshl_b32 s{sT}, 1, s{sWave}")
    a(f"s_sub_u32 s{sT}, s{sT}, 1")
    a(f"s_and_b32 s{sT}, s{sT}, {smask}")
    a(f"s_bcnt1_i32_b32 s{sT}, s{sT}")
    a(f"s_mul_i32 s{sA2}, s{sJ}, {NS}")
    a(f"s_add_u32 s{sA2}, s{sA2}, s{sT}")
    a(f"s_add_u32 s{sA2}, s{sA2}, {24*ntile0}")
    a(f"s_lshl_b32 s{sA2}, s{sA2}, 13")
    a(f"s_cmp_eq_u32 s{sPM}, 1")
    a(f"s_cselect_b32 s{sA2}, s{sA2}, {LIMIT}")
    a(f"v_mov_b32 v{vHd}, {L_HEAD}")
    a(f"v_mov_b32 v{vOne}, 1")
    a(f"s_mov_b32 s{sC1}, {hex(f2u(SC))}")
    a("s_waitcnt lgkmcnt(0)")
    a(f"s_mul_i32 s{sTag}, s{sE}, 0x9E3779B1")
    a(f"s_add_u32 s{sTag}, s{sTag}, 0x7F4A7C15")
    a(f"v_mov_b32 v{vT+3}, {L_FLQ}")
    a(f"s_mov_b32 s{sSpin}, 0")
    a("L_wq:")
    a(f"ds_read_b32 v{vT+2}, v{vT+3}")
    a("s_waitcnt lgkmcnt(0)")
    a(f"v_readfirstlane_b32 s{sT}, v{vT+2}")
    a("s_nop 0")
    a(f"s_cmp_eq_u32 s{sT}, 1")
    a("s_cbranch_scc1 L_barB")
    a("s_sleep 2")
    a(f"s_add_u32 s{sSpin}, s{sSpin}, 1")
    a(f"s_cmp_lt_u32 s{sSpin}, {MAXSPIN*16}")
    a("s_cbranch_scc1 L_wq")
    a("s_branch L_barB")

    a("L_helper1:")
    if prio:
        a("s_setprio 3")
    t = vT
    a(f"v_mov_b32 v{t}, {L_FLQ}")
    a(f"v_mov_b32 v{t+2}, 0")
    a(f"ds_write_b32 v{t}, v{t+2}")
    a(f"s_lshr_b32 s{sT+5}, s2, 3")
    a(f"s_lshl_b32 s{sT+5}, s{sT+5}, 2")
    a(f"s_add_u32 s{sT+5}, s{sT+5}, s{sJ}")
    a(f"s_lshr_b32 s{sT}, s{sT+5}, 1")
    a(f"s_lshl_b32 s{sT}, s{sT}, 7")
    a(f"s_lshl_b32 s{sT+3}, s{sT+5}, 9")
    a(f"s_add_u32 s{sT+3}, s{sT+3}, {WS_QG}")
    a(f"s_and_b32 s{sT+4}, s{sT+5}, 1")
    a(f"s_mov_b32 s{sT+1}, 8192")
    a(f"s_sub_u32 s{sT+2}, {448*8192}, s{sT}")
    a(f"s_cmp_lt_u32 s{sJ}, {0 if 'nounit' in exp else 4}")
    a(f"s_cselect_b32 s{sT+2}, s{sT+2}, 0")
    a(f"v_lshrrev_b32 v{t}, 3, v{vLane}")
    a(f"v_mul_lo_u32 v{t}, v{t}, s{sT+1}")
    a(f"v_and_b32 v{t+1}, 7, v{vLane}")
    a(f"v_lshl_add_u32 v{t}, v{t+1}, 4, v{t}")
    a(f"v_lshlrev_b32 v{t+2}, 1, v{vLane}")
    a(f"s_mul_i32 s{sQ}, s{sT+4}, 224")
    a(f"s_mul_i32 s{sQ}, s{sQ}, s{sT+1}")
    a(f"s_lshl_b32 s{sQ+1}, s{sT+1}, 3")
    a("s_waitcnt lgkmcnt(0)")
    a(f"s_load_dword s{sE}, s[{sWs}:{sWs+1}], {WS_EPOCH}")
    srd(sR1, sWq, off_s=sT, size_s=sT + 2)
    srd(sR0, sX, size=896)
    for k in range(7):
        a(f"buffer_load_ushort v{vX+k}, v{t+2}, s[{sR0}:{sR0+3}], 0 offen offset:{128*k}")
    for i in range(28):
        a(f"buffer_load_dwordx4 v[{vW+4*i}:{vW+4*i+3}], v{t}, s[{sR1}:{sR1+3}], s{sQ} offen {wflags}")
        if i < 27:
            a(f"s_add_u32 s{sQ}, s{sQ}, s{sQ+1}")
    a("s_waitcnt lgkmcnt(0)")
    if a0mode == "issue":
        a("s_barrier")
    stamp(1)
    a(f"s_mul_i32 s{sTag}, s{sE}, 0x9E3779B1")
    a(f"s_add_u32 s{sTag}, s{sTag}, 0x7F4A7C15")
    a(f"s_lshr_b32 s{sE}, s2, 3")
    a(f"s_cmp_lt_u32 s{sE}, {28 if NPM < NPRE else 0}")
    a(f"s_cselect_b32 s{sQ+2}, 7, 8")
    a(f"s_mov_b32 s{sQ+4}, {CT0}")
    a(f"s_cselect_b32 s{sQ+4}, {CT0M}, s{sQ+4}")
    a(f"s_cselect_b32 s{sQ+5}, 1, 0")
    a(f"s_cmp_gt_u32 s{sJ}, 4")
    a(f"s_cselect_b32 s{sQ+3}, s{sQ+5}, 0")
    a(f"s_sub_u32 s{sQ+3}, s{sJ}, s{sQ+3}")
    a(f"s_cmp_eq_u32 s{sJ}, 4")
    a(f"s_cselect_b32 s{sQ+5}, s{sQ+5}, 0")
    a(f"s_cmp_eq_u32 s{sQ+5}, 1")
    a(f"s_mov_b32 s{sA1}, {NPRE}")
    a(f"s_cselect_b32 s{sA1}, {NPM}, s{sA1}")
    a(f"s_cmp_eq_u32 s{sJ}, 0")
    a("s_cbranch_scc0 L_noctinit")
    a(f"s_lshr_b32 s{sE}, s2, 3")
    a(f"s_lshl_b32 s{sE}, s{sE}, 8")
    a(f"s_add_u32 s{sE}, s{sE}, {WS_CT}")
    srd(sCT, sWs, off_s=sE, size=8)
    a(f"v_mov_b32 v{vA}, s{sQ+4}")
    a(f"v_mov_b32 v{vA+1}, s{sTag}")
    a(f"v_mov_b32 v{vZ}, 0")
    a("s_mov_b64 exec, 1")
    a(f"buffer_store_dwordx2 v[{vA}:{vA+1}], v{vZ}, s[{sCT}:{sCT+3}], 0 offen sc1")
    a("s_mov_b64 exec, -1")
    a("s_waitcnt vmcnt(29)")
    a("s_branch L_ctdone")
    a("L_noctinit:")
    a("s_waitcnt vmcnt(28)")
    a("L_ctdone:")
    if 'noq' in exp:
        a(f"v_mov_b32 v{vM}, {hex(f2u(-1e30))}")
        a(f"v_mov_b32 v{vL}, 0")
        for i in range(8):
            a(f"v_mov_b32 v{vO+i}, 0")
        a("s_waitcnt vmcnt(0) lgkmcnt(0)")
        a("s_setprio 0")
        a("s_branch L_barB")
    for k in range(7):
        a(f"v_lshlrev_b32 v{vX+k}, 16, v{vX+k}")
    u = vQ
    a(f"v_add_f32 v{u}, v{vX}, v{vX+1}")
    for k in range(2, 7):
        a(f"v_add_f32 v{u}, v{u}, v{vX+k}")
    row16_reduce([u])
    a("s_nop 1")
    xrow_reduce(u, u + 1, "v_add_f32")
    a(f"v_mul_f32 v{u}, {hex(f2u(1.0/448))}, v{u}")
    a(f"v_sub_f32 v{u+2}, v{vX}, v{u}")
    a(f"v_mul_f32 v{u+3}, v{u+2}, v{u+2}")
    for k in range(1, 7):
        a(f"v_sub_f32 v{u+2}, v{vX+k}, v{u}")
        a(f"v_fmac_f32 v{u+3}, v{u+2}, v{u+2}")
    row16_reduce([u + 3])
    a("s_nop 1")
    xrow_reduce(u + 3, u + 1, "v_add_f32")
    a(f"v_mul_f32 v{u+3}, {hex(f2u(1.0/448))}, v{u+3}")
    bf16_round(u + 3, u + 3)
    a(f"v_add_f32 v{u+3}, {hex(f2u(1e-5))}, v{u+3}")
    bf16_round(u + 3, u + 3)
    a(f"v_sqrt_f32 v{u+3}, v{u+3}")
    a("s_nop 0")
    bf16_round(u + 3, u + 3)
    bf16_round(u, u)
    a(f"v_rcp_f32 v{u+4}, v{u+3}")
    a("s_nop 0")
    for k in range(7):
        d = vX + k
        a(f"v_sub_f32 v{d}, v{d}, v{u}")
        bf16_round(d, d)
        a(f"v_mul_f32 v{u+5}, v{d}, v{u+4}")
        a(f"v_fma_f32 v{d}, -v{u+5}, v{u+3}, v{d}")
        a(f"v_fma_f32 v{d}, v{d}, v{u+4}, v{u+5}")
        bf16_round(d, d)
    a(f"v_lshlrev_b32 v{t+3}, 2, v{vLane}")
    for k in range(7):
        a(f"ds_write_b32 v{t+3}, v{vX+k} offset:{L_XN + 256*k}")
    a(f"v_lshrrev_b32 v{t+3}, 3, v{vLane}")
    a(f"v_lshlrev_b32 v{t+3}, 2, v{t+3}")
    a(f"s_mul_i32 s{sQ}, s{sT+4}, 896")
    a(f"v_add_u32 v{t+3}, s{sQ}, v{t+3}")
    a("s_waitcnt lgkmcnt(0)")
    xr = vQ + 4
    for i in range(28):
        a(f"ds_read_b32 v{xr+i}, v{t+3} offset:{L_XN + 32*i}")
    acc = vP
    for i in range(8):
        a(f"v_mov_b32 v{acc+i}, 0")
    a("s_waitcnt lgkmcnt(0)")
    for i in range(28):
        a(f"s_waitcnt vmcnt({27-i})")
        a(f"v_lshrrev_b32 v{t+4}, 16, v{xr+i}")
        for d in range(4):
            w = vW + 4 * i + d
            a(f"v_dot2c_f32_bf16 v{acc+2*d}, v{w}, v{t+4}")
            a(f"v_dot2c_f32_bf16 v{acc+2*d+1}, v{w}, v{xr+i}")
    if a0mode == "landed":
        a("s_barrier")
    rem = transposed_reduce([acc + i for i in range(8)])
    a("s_nop 1")
    for r in rem:
        a(f"v_add_f32_dpp v{r}, v{r}, v{r} row_ror:8 row_mask:0xf bank_mask:0xf")
    a(f"v_mov_b32 v{acc+4}, v{rem[0]}")
    a(f"v_mov_b32 v{acc+5}, s{sTag}")
    a(f"v_mov_b32 v{acc+6}, v{rem[1]}")
    a(f"v_mov_b32 v{acc+7}, s{sTag}")
    a(f"v_and_b32 v{t+3}, 7, v{vLane}")
    a(f"v_lshlrev_b32 v{t+3}, 6, v{t+3}")
    a(f"v_lshrrev_b32 v{t+4}, 4, v{vLane}")
    a(f"v_lshl_add_u32 v{t+3}, v{t+4}, 4, v{t+3}")
    a(f"s_cmp_lt_u32 s{sJ}, 4")
    a("s_cbranch_scc0 L_nopub")
    srd(sR0, sWs, off_s=sT + 3, size=512)
    a(f"s_mov_b32 s{sSave}, 0x00ff00ff")
    a(f"s_mov_b32 s{sSave+1}, 0x00ff00ff")
    a(f"s_mov_b64 exec, s[{sSave}:{sSave+1}]")
    a(f"buffer_store_dwordx4 v[{acc+4}:{acc+7}], v{t+3}, s[{sR0}:{sR0+3}], 0 offen sc1")
    a("s_mov_b64 exec, -1")
    a("L_nopub:")
    stamp(2)
    a(f"v_lshlrev_b32 v{t+3}, 4, v{vLane}")
    a(f"v_mov_b32 v{vQ}, -1")
    a(f"v_mov_b32 v{vQ+1}, -1")
    a(f"v_mov_b32 v{vQ+2}, -1")
    a(f"v_mov_b32 v{vQ+3}, -1")
    for i in range(4):
        a(f"ds_write_b128 v{t+3}, v[{vQ}:{vQ+3}] offset:{L_QUE + 1024*i}")
    a(f"v_lshlrev_b32 v{t+3}, 2, v{vLane}")
    a(f"ds_write_b32 v{t+3}, v{vQ} offset:{L_QUE + 4096}")
    a(f"ds_write_b32 v{t+3}, v{vQ} offset:{L_QUE + 4096 + 256}")
    a(f"s_add_u32 s{sE}, s{sJ}, {S0}")
    a(f"s_add_u32 s{sQ+3}, s{sQ+3}, {S0 + 8*NPM}")
    for blk in range((NPRE + 63) // 64):
        a(f"v_add_u32 v{vQ+4}, {blk*64}, v{vLane}")
        a(f"v_lshlrev_b32 v{t+4}, 3, v{vQ+4}")
        a(f"v_add_u32 v{t+4}, s{sE}, v{t+4}")
        a(f"v_subrev_u32 v{vQ+5}, {NPM}, v{vQ+4}")
        a(f"v_mul_lo_u32 v{vQ+5}, v{vQ+5}, s{sQ+2}")
        a(f"v_add_u32 v{vQ+5}, s{sQ+3}, v{vQ+5}")
        a(f"v_cmp_gt_u32 vcc, {NPM}, v{vQ+4}")
        a("s_nop 1")
        a(f"v_cndmask_b32 v{t+4}, v{vQ+5}, v{t+4}, vcc")
        a(f"v_cmp_gt_u32 vcc, s{sA1}, v{vQ+4}")
        a("s_nop 1")
        a(f"v_cndmask_b32 v{t+4}, v{vQ}, v{t+4}, vcc")
        a(f"ds_write_b32 v{t+3}, v{t+4} offset:{L_QUE + 256*blk}")
    a(f"v_mov_b32 v{t+4}, 0")
    a(f"v_mov_b32 v{t+3}, {L_HEAD}")
    a(f"ds_write_b32 v{t+3}, v{t+4}")
    a(f"s_lshl_b32 s{sT}, s{sKap}, 13")
    a(f"s_add_u32 s{sT}, s{sT}, {WS_QG}")
    srd(sR0, sWs, off_s=sT, size=8192)
    a(f"v_lshlrev_b32 v{t}, 4, v{vLane}")
    a(f"s_mov_b32 s{sT+1}, 4096")
    qg = vW

    def qload(b):
        so = "0" if b < 4 else f"s{sT+1}"
        a(f"buffer_load_dwordx4 v[{qg+4*b}:{qg+4*b+3}], v{t}, s[{sR0}:{sR0+3}], {so} offen offset:{(b%4)*1024} sc1")
    if qmask:
        poll_masked(8, qload, lambda b: [qg + 4 * b + 1, qg + 4 * b + 3], t + 2, "L_pq", sleep_q)
    else:
        poll(lambda: [qload(b) for b in range(8)], [qg + 4 * b + k for b in range(8) for k in (1, 3)], t + 2, "L_pq", sleep_q)
    for b in range(8):
        a(f"v_permlane32_swap_b32 v{qg+4*b}, v{qg+4*b+2}")
    a("s_nop 1")
    for b in range(8):
        a(f"v_add_f32 v{qg+4*b}, v{qg+4*b}, v{qg+4*b+2}")
    for b in range(8):
        a(f"v_cvt_pk_bf16_f32 v{qg+4*b}, v{qg+4*b}, v{qg+4*b}")
    a(f"v_and_b32 v{t}, 31, v{vLane}")
    a(f"v_lshlrev_b32 v{t}, 2, v{t}")
    a(f"v_lshrrev_b32 v{t+1}, 5, v{vLane}")
    a(f"v_lshl_add_u32 v{t}, v{t+1}, 1, v{t}")
    for b in range(8):
        a(f"ds_write_b16 v{t}, v{qg+4*b} offset:{L_Q + 128*b}")
    a(f"v_mov_b32 v{vM}, {hex(f2u(-1e30))}")
    a(f"v_mov_b32 v{vL}, 0")
    for i in range(8):
        a(f"v_mov_b32 v{vO+i}, 0")
    a("s_waitcnt lgkmcnt(0)")
    a(f"v_mov_b32 v{t}, 1")
    a(f"v_mov_b32 v{t+1}, {L_FLQ}")
    a(f"ds_write_b32 v{t+1}, v{t}")
    if prio:
        a("s_setprio 0")
    a("L_barB:")
    stamp(3)
    a(f"s_lshr_b32 s{sCB}, s2, 3")
    a(f"s_cmp_eq_u32 s{sJ}, 5")
    a(f"s_cselect_b32 s{sCB}, s{sCB}, 255")
    a(f"s_cmp_eq_u32 s{sWave}, 0")
    a("s_cbranch_scc1 L_helper2")
    t = vT
    a(f"v_bfe_u32 v{t}, v{vLane}, 3, 1")
    a(f"v_lshlrev_b32 v{t}, 9, v{t}")
    a(f"v_lshrrev_b32 v{t+1}, 4, v{vLane}")
    a(f"v_lshl_add_u32 v{t}, v{t+1}, 4, v{t}")
    for j in range(8):
        a(f"ds_read_b128 v[{vQ+4*j}:{vQ+4*j+3}], v{t} offset:{L_Q + 64*j}")
    a("s_waitcnt lgkmcnt(0)")

    def qk(slot):
        for j in range(8):
            c = "0" if j == 0 else f"v[{vS}:{vS+3}]"
            a(f"v_mfma_f32_16x16x32_bf16 v[{vS}:{vS+3}], {sreg(slot,j)}, v[{vQ+4*j}:{vQ+4*j+3}], {c}")

    def softmax():
        t = vT
        if 'nosm' in exp:
            return
        a(f"v_cvt_pk_bf16_f32 v{t}, v{vS}, v{vS+1}")
        a(f"v_cvt_pk_bf16_f32 v{t+1}, v{vS+2}, v{vS+3}")
        a(f"v_lshlrev_b32 v{vS}, 16, v{t}")
        a(f"v_and_b32 v{vS+1}, 0xffff0000, v{t}")
        a(f"v_lshlrev_b32 v{vS+2}, 16, v{t+1}")
        a(f"v_and_b32 v{vS+3}, 0xffff0000, v{t+1}")
        a(f"v_max3_f32 v{t}, v{vS}, v{vS+1}, v{vS+2}")
        a(f"v_max_f32 v{t}, v{t}, v{vS+3}")
        xrow_reduce(t, t + 1, "v_max_f32")
        a(f"v_mul_f32 v{t}, s{sC1}, v{t}")
        a(f"v_max_f32 v{t}, v{t}, v{vM}")
        a(f"v_sub_f32 v{t+1}, v{vM}, v{t}")
        a(f"v_exp_f32 v{t+1}, v{t+1}")
        a(f"v_mov_b32 v{vM}, v{t}")
        for i in range(4):
            a(f"v_fma_f32 v{vS+i}, v{vS+i}, s{sC1}, -v{t}")
        for i in range(4):
            a(f"v_exp_f32 v{vS+i}, v{vS+i}")
        for i in range(8):
            a(f"v_mul_f32 v{vO+i}, v{vO+i}, v{t+1}")
        a(f"v_add_f32 v{t+2}, v{vS}, v{vS+1}")
        a(f"v_add_f32 v{t+3}, v{vS+2}, v{vS+3}")
        a(f"v_add_f32 v{t+2}, v{t+2}, v{t+3}")
        a(f"v_fma_f32 v{vL}, v{vL}, v{t+1}, v{t+2}")
        for i in range(4):
            a(f"v_cvt_pk_bf16_f32 v{t+2+i}, v{vS+i}, v{vS+i}")
        for i in range(4):
            for j in range(4):
                a(f"v_and_b32 v{vP+4*i+j}, v{t+2+i}, v{vMask+j}")

    def pv(slot):
        for i in range(4):
            for h in range(2):
                a(f"v_mfma_f32_16x16x32_bf16 v[{vO+4*h}:{vO+4*h+3}], {sreg(slot,i*2+h)}, v[{vP+4*i}:{vP+4*i+3}], v[{vO+4*h}:{vO+4*h+3}]")

    def static_tile(dst, tau):
        if tau < ntile0:
            a(f"s_add_u32 s{dst}, s{sA1}, {24*tau*8192}")
        else:
            a(f"s_add_u32 s{dst}, s{sA2}, {(tau-ntile0)*8*NS*8192}")

    slot_of_group = {n: n for n in range(G0)}
    issued = G0
    free = []
    treg = lambda tau: sQ + (tau % 8)
    got = set()

    def get_tile(tau):
        if tau not in got:
            got.add(tau)
            static_tile(treg(tau), tau)
    nissue = T - (G0 - G)
    issue_steps = set(2 * k + 1 for k in range(nissue))
    for n in range(n0):
        tau = n >> 1
        if n % 2 == 0 and tau >= ntile0:
            a(f"s_cmp_ge_u32 s{treg(tau)}, {LIMIT}")
            a("s_cbranch_scc1 L_loopend")
        a(f"s_waitcnt vmcnt({min(63, (issued-n-1)*8)})")
        if n % 2 == 0:
            qk(slot_of_group[n])
        else:
            a("s_nop 1")
            pv(slot_of_group[n])
        free.append(slot_of_group[n])
        if n in issue_steps:
            get_tile(issued >> 1)
            sl = free.pop(0)
            slot_of_group[issued] = sl
            issue_group(issued % 2 == 0, sl, treg(issued >> 1))
            issued += 1
        if n % 2 == 0:
            a("s_nop 7")
            softmax()
    assert issued == n0 + G
    sOf = sQ
    for i in range(F):
        get_tile(tau0 + i)
    for i in range(F):
        a(f"s_mov_b32 s{sT+i}, s{treg(tau0+i)}")
    for i in range(F):
        a(f"s_mov_b32 s{sOf+i}, s{sT+i}")
    static_tile(sT, tau0 + F)
    a(f"s_lshr_b32 s{sT}, s{sT}, 13")
    a(f"v_mov_b32 v{vE}, s{sT}")
    stamp(4)
    period_tiles = 1 if G == 2 else (G // 2 if G % 2 == 0 else G)
    slot_of = lambda n: slot_of_group[n0 + ((n - n0) % G)]
    W = 8 * G - 1
    empties = []

    def decode(idx):
        a("s_waitcnt lgkmcnt(0)")
        a(f"v_readfirstlane_b32 s{sT}, v{vE}")
        a("s_nop 0")
        a(f"s_cmp_eq_u32 s{sT}, -1")
        a(f"s_cbranch_scc1 L_empty{idx}")
        a(f"L_entryok{idx}:")
        a(f"s_min_u32 s{sT}, s{sT}, {TILES}")
        a(f"s_lshl_b32 s{sOf+F}, s{sT}, 13")
        empties.append(idx)

    def take_ticket():
        a(f"s_mov_b64 exec, s[{sPM}:{sPM+1}]")
        a(f"ds_add_rtn_u32 v{vTk}, v{vHd}, v{vOne}")
        a("s_mov_b64 exec, -1")

    def read_entry():
        a(f"s_mov_b64 exec, s[{sPM}:{sPM+1}]")
        a(f"v_lshlrev_b32 v{vTk}, 2, v{vTk}")
        a(f"ds_read_b32 v{vE}, v{vTk} offset:{L_QUE}")
        a(f"v_mov_b32 v{vAd}, v{vTk}")
        a("s_mov_b64 exec, -1")

    def ld(isk, slot, j, soff):
        if isk:
            a(f"buffer_load_dwordx4 {sreg(slot,j)}, v{vKoff}, s[{sK}:{sK+3}], s{soff} offen offset:{koff(j)} {kflags}")
        else:
            a(f"buffer_load_dwordx4 {sreg(slot,j)}, v{vVoff}, s[{sV}:{sV+3}], s{soff} offen offset:{voff(j)} {vflags}")

    a("L_loop:")
    for tl in range(period_tiles):
        n = n0 + 2 * tl
        a(f"s_cmp_ge_u32 s{sOf}, {LIMIT}")
        a("s_cbranch_scc1 L_loopend")
        if G % 2 == 0:
            decode(tl)
            take_ticket()
        else:
            take_ticket()
        m = n + G
        rel = (m >> 1) - (n >> 1)
        sl = slot_of(n)
        for j in range(8):
            a(f"s_waitcnt vmcnt({W})")
            c = "0" if j == 0 else f"v[{vS}:{vS+3}]"
            a(f"v_mfma_f32_16x16x32_bf16 v[{vS}:{vS+3}], {sreg(sl,j)}, v[{vQ+4*j}:{vQ+4*j+3}], {c}")
            ld(m % 2 == 0, sl, j, sOf + rel)
        a("s_nop 7")
        softmax()
        n += 1
        m = n + G
        rel = (m >> 1) - (n >> 1)
        sl = slot_of(n)
        if G % 2 == 0:
            a("s_waitcnt lgkmcnt(0)")
            read_entry()
        else:
            decode(tl)
            read_entry()
        for j in range(8):
            i, h = j >> 1, j & 1
            a(f"s_waitcnt vmcnt({W})")
            a(f"v_mfma_f32_16x16x32_bf16 v[{vO+4*h}:{vO+4*h+3}], {sreg(sl,j)}, v[{vP+4*i}:{vP+4*i+3}], v[{vO+4*h}:{vO+4*h+3}]")
            ld(m % 2 == 0, sl, j, sOf + rel)
        for i in range(F):
            a(f"s_mov_b32 s{sOf+i}, s{sOf+i+1}")
    a("s_branch L_loop")
    for idx in empties:
        a(f"L_empty{idx}:")
        if stamps:
            a(f"s_add_u32 s{sSt+4}, s{sSt+4}, 1")
        a(f"s_mov_b32 s{sSpin}, 0")
        a(f"L_emptyl{idx}:")
        a("s_sleep 1")
        a(f"ds_read_b32 v{vE}, v{vAd} offset:{L_QUE}")
        a("s_waitcnt lgkmcnt(0)")
        a(f"v_readfirstlane_b32 s{sT}, v{vE}")
        a("s_nop 0")
        a(f"s_cmp_eq_u32 s{sT}, -1")
        a(f"s_cbranch_scc0 L_entryok{idx}")
        if stamps:
            a(f"s_add_u32 s{sSt+5}, s{sSt+5}, 1")
        a(f"s_add_u32 s{sSpin}, s{sSpin}, 1")
        a(f"s_cmp_lt_u32 s{sSpin}, {MAXSPIN*16}")
        a(f"s_cbranch_scc1 L_emptyl{idx}")
        a(f"s_mov_b32 s{sT}, {TILES}")
        a(f"s_branch L_entryok{idx}")
    a("L_loopend:")
    a("s_waitcnt vmcnt(0)")
    a("s_branch L_combine")

    a("L_helper2:")
    t = vT
    if 'nomlp' in exp:
        a("s_branch L_feed")
    a(f"s_lshl_b32 s{sT}, s{sKap}, 9")
    a(f"s_lshl_b32 s{sT+1}, s{sC}, 4")
    a(f"s_add_u32 s{sT}, s{sT}, s{sT+1}")
    a(f"s_mul_i32 s{sT}, s{sT}, 896")
    srd(sR0, sWo, off_s=sT, size=16 * 896)
    a(f"v_lshlrev_b32 v{t}, 4, v{vLane}")
    wr = 144
    for r in range(16):
        a(f"s_mov_b32 s{sT+1}, {r*896}")
        a(f"buffer_load_dwordx4 v[{wr+4*r}:{wr+4*r+3}], v{t}, s[{sR0}:{sR0+3}], s{sT+1} offen {wflags}")
    a(f"s_mov_b32 s{sT}, 0x05040100")
    a(f"s_mov_b32 s{sT+1}, 0x07060302")
    a("s_waitcnt vmcnt(0)")
    for pr in range(8):
        r0 = wr + (2 * pr) * 4
        r1 = r0 + 4
        for d in range(4):
            o = vIW + pr * 8 + 2 * d
            a(f"v_perm_b32 v{o}, v{r1+d}, v{r0+d}, s{sT}")
            a(f"v_perm_b32 v{o+1}, v{r1+d}, v{r0+d}, s{sT+1}")
    sM = sQ + 2
    a(f"s_lshr_b32 s{sM}, s2, 3")
    a(f"s_cmp_eq_u32 s{sJ}, 4")
    a(f"s_cselect_b32 s{sM}, s{sM}, 255")
    a(f"s_cmp_lt_u32 s{sM}, {0 if 'nomlp2' in exp else 28}")
    a("s_cbranch_scc0 L_nomlp")
    a(f"s_lshl_b32 s{sT}, s{sM}, 7")
    if 'mlpc' in exp:
        a(f"s_mul_i32 s{sT}, s{sM}, 57344")
    a(f"s_sub_u32 s{sT+1}, {448*3584}, s{sT}")
    if 'guoob' in exp:
        a(f"s_mov_b32 s{sT+1}, 0")
    srd(sR0, sWg, off_s=sT, size_s=sT + 1)
    srd(sR1, sWu, off_s=sT, size_s=sT + 1)
    a(f"v_lshrrev_b32 v{t}, 3, v{vLane}")
    a(f"v_lshlrev_b32 v{t+1}, 2, v{t}")
    a(f"v_mul_u32_u24 v{t}, {128 if 'mlpc' in exp else 3584}, v{t}")
    a(f"v_and_b32 v{t+2}, 7, v{vLane}")
    a(f"v_lshl_add_u32 v{t}, v{t+2}, 4, v{t}")
    acc = vP
    for i in range(16):
        a(f"v_mov_b32 v{acc+i}, 0")
    a(f"s_mov_b32 s{sQ}, 0")
    a(f"s_mov_b32 s{sQ+1}, 0")
    a("L_gu:")
    for k in range(GUK):
        a(f"buffer_load_dwordx4 v[{vW+8*k}:{vW+8*k+3}], v{t}, s[{sR0}:{sR0+3}], s{sQ} offen {mflags}")
        a(f"buffer_load_dwordx4 v[{vW+8*k+4}:{vW+8*k+7}], v{t}, s[{sR1}:{sR1+3}], s{sQ} offen {mflags}")
        a(f"s_add_u32 s{sQ}, s{sQ}, {1024 if 'mlpc' in exp else 8*3584}")
    for k in range(GUK):
        a(f"ds_read_b32 v{vQ+k}, v{t+1} offset:{L_XN + 32*k}")
    a(f"v_add_u32 v{t+1}, {32*GUK}, v{t+1}")
    a("s_waitcnt lgkmcnt(0)")
    for k in range(GUK):
        a(f"s_waitcnt vmcnt({2*(GUK-1-k)})")
        a(f"v_lshrrev_b32 v{t+2}, 16, v{vQ+k}")
        for mtx in range(2):
            for d in range(4):
                w = vW + 8 * k + 4 * mtx + d
                a(f"v_dot2_f32_bf16 v{acc+8*mtx+2*d}, v{w}, v{t+2}, v{acc+8*mtx+2*d}")
                a(f"v_dot2_f32_bf16 v{acc+8*mtx+2*d+1}, v{w}, v{vQ+k}, v{acc+8*mtx+2*d+1}")
    a(f"s_add_u32 s{sQ+1}, s{sQ+1}, 1")
    a(f"s_cmp_lt_u32 s{sQ+1}, {1 if 'gu1' in exp else 56//GUK}")
    a("s_cbranch_scc1 L_gu")
    rem = transposed_reduce([acc + i for i in range(16)])
    a("s_nop 1")
    for r in rem:
        a(f"v_add_f32_dpp v{r}, v{r}, v{r} row_ror:8 row_mask:0xf bank_mask:0xf")
    for i in range(4):
        a(f"v_mov_b32 v{acc+4+i}, v{rem[i]}")
    a("s_nop 1")
    for i in range(4):
        a(f"v_permlane32_swap_b32 v{rem[i]}, v{acc+4+i}")
    a("s_nop 1")
    for i in range(4):
        bf16_round(rem[i], rem[i])
        bf16_round(acc + 4 + i, acc + 4 + i)
        a(f"v_max_f32 v{rem[i]}, 0, v{rem[i]}")
        a(f"v_mul_f32 v{rem[i]}, v{rem[i]}, v{acc+4+i}")
        bf16_round(rem[i], rem[i])
    a(f"v_and_b32 v{t}, 7, v{vLane}")
    a(f"v_lshlrev_b32 v{t}, 5, v{t}")
    a(f"v_bfe_u32 v{t+1}, v{vLane}, 4, 1")
    a(f"v_lshl_add_u32 v{t}, v{t+1}, 4, v{t}")
    a(f"s_mov_b32 s{sSave}, -1")
    a(f"s_mov_b32 s{sSave+1}, 0")
    a(f"s_mov_b64 exec, s[{sSave}:{sSave+1}]")
    a(f"ds_write_b128 v{t}, v[{rem[0]}:{rem[3]}] offset:{L_H}")
    a("s_mov_b64 exec, -1")
    a(f"s_mul_i32 s{sT}, s{sM}, {64*896}")
    srd(sR0, sWd, off_s=sT, size=(0 if 'dnoob' in exp else 64 * 896))
    a(f"v_lshlrev_b32 v{t}, 4, v{vLane}")
    a(f"v_mov_b32 v{t+1}, 0")
    for i in range(8):
        a(f"v_mov_b32 v{acc+i}, 0")
    a(f"s_mov_b32 s{sQ}, 0")
    a(f"s_mov_b32 s{sQ+1}, 0")
    a("s_waitcnt lgkmcnt(0)")
    a("L_dn:")
    for r in range(DNR):
        a(f"buffer_load_dwordx4 v[{vW+4*r}:{vW+4*r+3}], v{t}, s[{sR0}:{sR0+3}], s{sQ} offen {mflags}")
        a(f"s_add_u32 s{sQ}, s{sQ}, 896")
    for q4 in range(DNR // 4):
        a(f"ds_read_b128 v[{vQ+4*q4}:{vQ+4*q4+3}], v{t+1} offset:{L_H + 16*q4}")
    a(f"v_add_u32 v{t+1}, {4*DNR}, v{t+1}")
    a("s_waitcnt lgkmcnt(0)")
    for r in range(DNR):
        a(f"s_waitcnt vmcnt({DNR-1-r})")
        a(f"v_lshrrev_b32 v{t+2}, 16, v{vQ+r}")
        for d in range(4):
            w = vW + 4 * r + d
            a(f"v_dot2_f32_bf16 v{acc+2*d}, v{w}, v{t+2}, v{acc+2*d}")
            a(f"v_dot2_f32_bf16 v{acc+2*d+1}, v{w}, v{vQ+r}, v{acc+2*d+1}")
    a(f"s_add_u32 s{sQ+1}, s{sQ+1}, 1")
    a(f"s_cmp_lt_u32 s{sQ+1}, {1 if 'dn1' in exp else 64//DNR}")
    a("s_cbranch_scc1 L_dn")
    if 'nofbp' not in exp:
        publish48(acc, WS_FB, t, 28, sM)
    a("L_nomlp:")
    a(f"s_cmp_lt_u32 s{sCB}, {0 if 'nofbg' in exp else 21}")
    a("s_cbranch_scc0 L_feed")
    a(f"s_lshl_b32 s{sT}, s{sCB}, 7")
    a(f"s_add_u32 s{sT}, s{sT}, {WS_FB}")
    srd(sR0, sWs, off_s=sT, size=28 * 2688)
    a(f"v_lshrrev_b32 v{t}, 3, v{vLane}")
    a(f"v_and_b32 v{t+1}, 7, v{vLane}")
    a(f"v_lshlrev_b32 v{t+1}, 4, v{t+1}")
    fb = 144
    for k in range(4):
        a(f"v_add_u32 v{t+4}, {8*k}, v{t}")
        a(f"v_min_u32 v{t+4}, 27, v{t+4}")
        a(f"v_mul_u32_u24 v{t+4}, 2688, v{t+4}")
        a(f"v_add_u32 v{fb+16+k}, v{t+4}, v{t+1}")

    def fbloads():
        for k in range(4):
            a(f"buffer_load_dwordx4 v[{fb+4*k}:{fb+4*k+3}], v{fb+16+k}, s[{sR0}:{sR0+3}], 0 offen sc1")
    poll(fbloads, [fb + 4 * k + 3 for k in range(4)], t + 2, "L_pfb", sleep_mid)
    acc = vP
    a(f"v_cmp_gt_u32 vcc, 4, v{t}")
    a("s_nop 1")
    for c in range(3):
        a(f"v_cndmask_b32 v{acc+c}, 0, v{fb+12+c}, vcc")
        a(f"v_add_f32 v{acc+c}, v{acc+c}, v{fb+c}")
        a(f"v_add_f32 v{t+2}, v{fb+4+c}, v{fb+8+c}")
        a(f"v_add_f32 v{acc+c}, v{acc+c}, v{t+2}")
    a("s_nop 1")
    for c in range(3):
        a(f"v_add_f32_dpp v{acc+c}, v{acc+c}, v{acc+c} row_ror:8 row_mask:0xf bank_mask:0xf")
    for c in range(3):
        xrow_reduce(acc + c, t + 2, "v_add_f32")
    a(f"v_mov_b32 v{acc+3}, 0")
    a(f"ds_write_b128 v{t+1}, v[{acc}:{acc+3}] offset:{L_B}")
    a("s_waitcnt lgkmcnt(0)")
    a("L_feed:")
    stamp(4)
    if dyn:
        t = vT
        sF, sN = sQ, sQ + 1
        a(f"s_lshr_b32 s{sT}, s2, 3")
        a(f"s_lshl_b32 s{sT}, s{sT}, 8")
        a(f"s_add_u32 s{sT}, s{sT}, {WS_CT}")
        srd(sCT, sWs, off_s=sT, size=8)
        a(f"v_mov_b32 v{vZ}, 0")
        a(f"v_mov_b32 v{t}, {L_HEAD}")
        a(f"s_mov_b32 s{sF}, s{sA1}")
        if LA2 is not None:
            a(f"s_mov_b32 s{sQ+6}, {LA}")
        if hist:
            a(f"v_mov_b32 v26, 0")
            a(f"s_mov_b32 s{sQ+3}, 0")
        a(f"s_mov_b32 s{sSpin}, 0")
        a("L_feedloop:")
        a(f"ds_read_b32 v{t+1}, v{t}")
        a("s_waitcnt lgkmcnt(0)")
        a(f"v_readfirstlane_b32 s{sN}, v{t+1}")
        if hist:
            a(f"s_lshr_b32 s{sQ+2}, s{sN}, 2")
            a(f"s_cmp_gt_u32 s{sQ+2}, s{sQ+3}")
            a("s_cbranch_scc0 L_nohist")
            a(f"s_mov_b32 s{sQ+3}, s{sQ+2}")
            a(f"s_memrealtime s[{sQ+4}:{sQ+5}]")
            a("s_waitcnt lgkmcnt(0)")
            a(f"s_min_u32 s{sQ+2}, s{sQ+2}, 63")
            a(f"s_mov_b32 m0, s{sQ+2}")
            a(f"v_writelane_b32 v26, s{sQ+4}, m0")
            a("L_nohist:")
        if LA2 is None:
            a(f"s_add_u32 s{sN}, s{sN}, {LA}")
        else:
            a(f"s_add_u32 s{sN}, s{sN}, s{sQ+6}")
        a(f"s_sub_i32 s{sN}, s{sN}, s{sF}")
        a(f"s_cmp_gt_i32 s{sN}, 0")
        a("s_cbranch_scc1 L_feedgo")
        a(f"s_sleep {sleep_feed}")
        a(f"s_add_u32 s{sSpin}, s{sSpin}, 1")
        a(f"s_cmp_lt_u32 s{sSpin}, {MAXSPIN*16}")
        a("s_cbranch_scc1 L_feedloop")
        a("s_branch L_feedend")
        a("L_feedgo:")
        a(f"s_min_u32 s{sN}, s{sN}, 8")
        a("L_feedretry:")
        a("s_mov_b64 exec, 1")
        a(f"v_mov_b32 v{vA}, s{sN}")
        a(f"v_mov_b32 v{vA+1}, 0")
        a(f"buffer_atomic_add_x2 v[{vA}:{vA+1}], v{vZ}, s[{sCT}:{sCT+3}], 0 offen sc0")
        a("s_mov_b64 exec, -1")
        a("s_waitcnt vmcnt(0)")
        a(f"v_readfirstlane_b32 s{sT+1}, v{vA+1}")
        a(f"v_readfirstlane_b32 s{sT}, v{vA}")
        a(f"s_cmp_eq_u32 s{sT+1}, s{sTag}")
        a("s_cbranch_scc1 L_feedok")
        a(f"s_add_u32 s{sSpin}, s{sSpin}, 1")
        a(f"s_cmp_lt_u32 s{sSpin}, {MAXSPIN*16}")
        a("s_cbranch_scc1 L_feedretry")
        a(f"s_mov_b32 s{sT}, {TILES}")
        a("L_feedok:")
        if LA2 is not None:
            a(f"s_cmp_ge_u32 s{sT}, {TILES - LAX}")
            a(f"s_cselect_b32 s{sQ+6}, {LA2}, s{sQ+6}")
        a(f"s_add_u32 s{sT+2}, s{sT}, s{sN}")
        a(f"s_cmp_ge_u32 s{sT+2}, {TILES}")
        a(f"s_cselect_b32 s{sN}, 32, s{sN}")
        a(f"v_add_u32 v{t+2}, s{sT}, v{vLane}")
        a(f"v_add_u32 v{t+3}, s{sF}, v{vLane}")
        a(f"v_lshlrev_b32 v{t+3}, 2, v{t+3}")
        a(f"s_lshl_b64 s[{sSave}:{sSave+1}], 1, s{sN}")
        a(f"s_sub_u32 s{sSave}, s{sSave}, 1")
        a(f"s_subb_u32 s{sSave+1}, s{sSave+1}, 0")
        a(f"s_mov_b64 exec, s[{sSave}:{sSave+1}]")
        a(f"ds_write_b32 v{t+3}, v{t+2} offset:{L_QUE}")
        a("s_mov_b64 exec, -1")
        a(f"s_add_u32 s{sF}, s{sF}, s{sN}")
        a(f"s_cmp_lt_u32 s{sT+2}, {TILES}")
        a("s_cbranch_scc1 L_feedloop")
        a("L_feedend:")
        a("s_waitcnt lgkmcnt(0)")
        if hist:
            a(f"s_lshl_b32 s{sT}, s2, 8")
            a(f"s_add_u32 s{sT}, s{sT}, 0x180000")
            srd(sR0, sWs, off_s=sT, size=256)
            a(f"v_lshlrev_b32 v27, 2, v{vLane}")
            a(f"buffer_store_dword v26, v27, s[{sR0}:{sR0+3}], 0 offen")

    a("L_combine:")
    stamp(5)
    t = vT
    xrow_reduce(vL, t, "v_add_f32")
    a(f"v_bfe_u32 v{t}, v{vLane}, 3, 1")
    a(f"v_lshlrev_b32 v{t+1}, 3, v{t}")
    a(f"s_lshl_b32 s{sT}, s{sWave}, 4")
    a(f"v_add_u32 v{t+1}, s{sT}, v{t+1}")
    a(f"ds_write_b64 v{t+1}, v[{vM}:{vM+1}] offset:{L_ST}")
    a(f"v_lshlrev_b32 v{t+3}, 10, v{t}")
    a(f"v_lshrrev_b32 v{t+4}, 4, v{vLane}")
    a(f"v_lshl_add_u32 v{t+3}, v{t+4}, 7, v{t+3}")
    a(f"v_and_b32 v{t+4}, 7, v{vLane}")
    a(f"v_lshl_add_u32 v{t+3}, v{t+4}, 2, v{t+3}")
    a(f"s_lshl_b32 s{sT}, s{sWave}, 11")
    a(f"v_add_u32 v{t+3}, s{sT}, v{t+3}")
    for h in range(2):
        for ii in range(4):
            a(f"ds_write_b32 v{t+3}, v{vO+4*h+ii} offset:{L_RED + h*512 + ii*32}")
    a(f"s_lshl_b32 s{sT}, s{sKap}, 5")
    a(f"s_add_u32 s{sT}, s{sT}, s{sC}")
    a(f"s_lshl_b32 s{sT}, s{sT}, 13")
    a(f"s_add_u32 s{sT}, s{sT}, {WS_PG}")
    srd(sR0, sWs, off_s=sT, size=8192)
    a(f"s_mov_b32 s{sT+1}, 4096")
    a("s_waitcnt lgkmcnt(0)")
    a("s_barrier")
    st = vP
    a(f"v_mov_b32 v{t+1}, 0")
    for w in range(1, 4):
        a(f"ds_read_b128 v[{st+4*w}:{st+4*w+3}], v{t+1} offset:{L_ST+16*w}")
    a(f"v_lshlrev_b32 v{t}, 2, v0")
    ov = vQ + 8
    for h in range(2):
        for w in range(1, 4):
            a(f"ds_read_b32 v{ov+3*h+w-1}, v{t} offset:{L_RED + w*2048 + h*1024}")
    a(f"v_lshlrev_b32 v{t}, 4, v0")
    a("s_waitcnt lgkmcnt(6)")
    g = vO
    for h in range(2):
        M = g + 4 * h + 1
        Lr = g + 4 * h + 2
        a(f"v_max3_f32 v{M}, v{st+4+2*h}, v{st+8+2*h}, v{st+12+2*h}")
        for w in range(1, 4):
            a(f"v_sub_f32 v{vQ+3*h+w-1}, v{st+4*w+2*h}, v{M}")
        for w in range(1, 4):
            a(f"v_exp_f32 v{vQ+3*h+w-1}, v{vQ+3*h+w-1}")
        a("s_nop 0")
        a(f"v_mul_f32 v{Lr}, v{vQ+3*h}, v{st+4+2*h+1}")
        for w in range(2, 4):
            a(f"v_fmac_f32 v{Lr}, v{vQ+3*h+w-1}, v{st+4*w+2*h+1}")
        a(f"v_mov_b32 v{g+4*h+3}, s{sTag}")
    a("s_waitcnt lgkmcnt(0)")
    for h in range(2):
        a(f"v_mul_f32 v{g+4*h}, v{vQ+3*h}, v{ov+3*h}")
        for w in range(2, 4):
            a(f"v_fmac_f32 v{g+4*h}, v{vQ+3*h+w-1}, v{ov+3*h+w-1}")
    a(f"buffer_store_dwordx4 v[{g}:{g+3}], v{t}, s[{sR0}:{sR0+3}], 0 offen sc1")
    a(f"buffer_store_dwordx4 v[{g+4}:{g+7}], v{t}, s[{sR0}:{sR0+3}], s{sT+1} offen sc1")
    stamp(6)
    if 'notail' in exp:
        a("s_branch L_fin")
    a(f"s_cmp_eq_u32 s{sWave}, 0")
    a("s_cbranch_scc0 L_s1done")
    a(f"s_lshl_b32 s{sT}, s{sKap}, 18")
    a(f"s_lshl_b32 s{sT+1}, s{sC}, 8")
    a(f"s_add_u32 s{sT}, s{sT}, s{sT+1}")
    a(f"s_add_u32 s{sT}, s{sT}, {WS_PG}")
    srd(sR0, sWs, off_s=sT, size=32 * 8192)
    a(f"v_lshrrev_b32 v{t}, 4, v{vLane}")
    a(f"v_lshlrev_b32 v{t}, 13, v{t}")
    a(f"v_and_b32 v{t+1}, 15, v{vLane}")
    a(f"v_lshl_add_u32 v{t}, v{t+1}, 4, v{t}")
    pg = 160

    for k in range(8):
        a(f"v_add_u32 v{pg+32+k}, {k*32768}, v{t}")

    def pload(k):
        a(f"buffer_load_dwordx4 v[{pg+4*k}:{pg+4*k+3}], v{pg+32+k}, s[{sR0}:{sR0+3}], 0 offen sc1")
    poll_masked(8, pload, lambda k: [pg + 4 * k + 3], t + 2, "L_pp", sleep_tail)
    stamp(7)
    a(f"v_max3_f32 v{t+1}, v{pg+1}, v{pg+5}, v{pg+9}")
    a(f"v_max3_f32 v{t+1}, v{t+1}, v{pg+13}, v{pg+17}")
    a(f"v_max3_f32 v{t+1}, v{t+1}, v{pg+21}, v{pg+25}")
    a(f"v_max_f32 v{t+1}, v{t+1}, v{pg+29}")
    xrow_reduce(t + 1, t + 2, "v_max_f32")
    for k in range(8):
        a(f"v_sub_f32 v{pg+4*k+1}, v{pg+4*k+1}, v{t+1}")
    for k in range(8):
        a(f"v_exp_f32 v{pg+4*k+1}, v{pg+4*k+1}")
    a("s_nop 0")
    a(f"v_mul_f32 v{t+3}, v{pg+1}, v{pg}")
    a(f"v_mul_f32 v{t+4}, v{pg+1}, v{pg+2}")
    for k in range(1, 8):
        a(f"v_fmac_f32 v{t+3}, v{pg+4*k+1}, v{pg+4*k}")
        a(f"v_fmac_f32 v{t+4}, v{pg+4*k+1}, v{pg+4*k+2}")
    xrow_reduce(t + 3, t + 2, "v_add_f32")
    xrow_reduce(t + 4, t + 2, "v_add_f32")
    a(f"v_rcp_f32 v{t+5}, v{t+4}")
    a("s_nop 0")
    a(f"v_mul_f32 v{t+6}, v{t+3}, v{t+5}")
    a(f"v_fma_f32 v{t+3}, -v{t+6}, v{t+4}, v{t+3}")
    a(f"v_fma_f32 v{t+3}, v{t+3}, v{t+5}, v{t+6}")
    a("s_nop 1")
    a(f"v_mov_b32_dpp v{t+4}, v{t+3} row_shl:1 row_mask:0xf bank_mask:0xf")
    a("s_nop 0")
    a(f"v_cvt_pk_bf16_f32 v{t+3}, v{t+3}, v{t+4}")
    a("s_nop 0")
    for i in range(8):
        a(f"v_readlane_b32 s{sQ+i}, v{t+3}, {2*i}")
    a("s_nop 1")
    acc = vP
    for pr in range(8):
        for c in range(8):
            c0 = "0" if pr == 0 else f"v{acc+c}"
            a(f"v_dot2_f32_bf16 v{acc+c}, v{vIW+pr*8+c}, s{sQ+pr}, {c0}")
    publish48(acc, WS_FA, t, 256, 2)
    a("L_s1done:")
    stamp(8)
    t = vT
    a(f"s_cmp_lt_u32 s{sCB}, 21")
    a("s_cbranch_scc0 L_fin")
    a("s_barrier")
    a(f"s_lshl_b32 s{sT}, s{sCB}, 7")
    a(f"s_add_u32 s{sT}, s{sT}, {WS_FA}")
    srd(sR0, sWs, off_s=sT, size=256 * 2688)
    a(f"v_lshrrev_b32 v{t}, 3, v0")
    a(f"v_and_b32 v{t+1}, 7, v{t}")
    a(f"v_lshrrev_b32 v{t}, 3, v{t}")
    a(f"v_lshl_add_u32 v{t}, v{t}, 6, v{t+1}")
    a(f"v_mul_u32_u24 v{t}, 2688, v{t}")
    a(f"v_and_b32 v{t+1}, 7, v{vLane}")
    a(f"v_lshlrev_b32 v{t+1}, 4, v{t+1}")
    a(f"v_add_u32 v{t}, v{t}, v{t+1}")
    fa = vQ

    for k in range(8):
        a(f"v_add_u32 v{vW+k}, {k*8*2688}, v{t}")

    def faload(k):
        a(f"buffer_load_dwordx4 v[{fa+4*k}:{fa+4*k+3}], v{vW+k}, s[{sR0}:{sR0+3}], 0 offen sc1")
    a(f"s_mul_i32 s{sT+3}, s{sCB}, 37")
    a(f"s_lshr_b32 s{sT+3}, s{sT+3}, 8")
    a(f"s_mul_i32 s{sT+4}, s{sT+3}, 7")
    a(f"s_sub_u32 s{sT+4}, s{sCB}, s{sT+4}")
    a(f"s_lshl_b32 s{sT+4}, s{sT+4}, 6")
    a(f"s_mul_i32 s{sT+5}, s{sT+3}, 3")
    a(f"s_add_u32 s{sT+4}, s{sT+4}, s{sT+5}")
    a(f"v_and_b32 v{t+4}, 7, v{vLane}")
    a(f"v_lshlrev_b32 v{t+4}, 3, v{t+4}")
    a(f"v_lshrrev_b32 v{t+5}, 3, v{vLane}")
    a(f"v_add_u32 v{t+4}, v{t+4}, v{t+5}")
    a(f"v_add_u32 v{t+4}, s{sT+4}, v{t+4}")
    a(f"v_lshlrev_b32 v{t+4}, 1, v{t+4}")
    a(f"v_add_u32 v{t+6}, s{sT+5}, v{t+5}")
    a(f"v_cmp_gt_u32 vcc, 8, v{t+6}")
    a(f"v_cmp_gt_u32 s[{sSave}:{sSave+1}], 3, v{t+5}")
    a("s_nop 1")
    a(f"s_and_b64 s[{sSave}:{sSave+1}], s[{sSave}:{sSave+1}], vcc")
    srd(sR1, sX, size=896)
    a(f"buffer_load_ushort v{vP+8}, v{t+4}, s[{sR1}:{sR1+3}], 0 offen")
    poll_masked(8, faload, lambda k: [fa + 4 * k + 3], t + 2, "L_pfa", sleep_tail)
    stamp(9)
    acc = vP
    for c in range(3):
        a(f"v_add_f32 v{acc+c}, v{fa+c}, v{fa+4+c}")
        a(f"v_add_f32 v{t+2}, v{fa+8+c}, v{fa+12+c}")
        a(f"v_add_f32 v{acc+c}, v{acc+c}, v{t+2}")
        a(f"v_add_f32 v{t+2}, v{fa+16+c}, v{fa+20+c}")
        a(f"v_add_f32 v{t+3}, v{fa+24+c}, v{fa+28+c}")
        a(f"v_add_f32 v{t+2}, v{t+2}, v{t+3}")
        a(f"v_add_f32 v{acc+c}, v{acc+c}, v{t+2}")
    a("s_nop 1")
    for c in range(3):
        a(f"v_add_f32_dpp v{acc+c}, v{acc+c}, v{acc+c} row_ror:8 row_mask:0xf bank_mask:0xf")
    for c in range(3):
        xrow_reduce(acc + c, t + 2, "v_add_f32")
    a(f"v_mov_b32 v{acc+3}, 0")
    a(f"s_lshl_b32 s{sT}, s{sWave}, 7")
    a(f"v_add_u32 v{t+2}, s{sT}, v{t+1}")
    a(f"ds_write_b128 v{t+2}, v[{acc}:{acc+3}] offset:{L_FIN}")
    srd(sR1, sOut, size=896)
    a("s_waitcnt lgkmcnt(0)")
    a("s_barrier")
    a(f"s_cmp_eq_u32 s{sWave}, 0")
    a("s_cbranch_scc0 L_fin")
    a(f"v_min_u32 v{t+5}, 3, v{t+5}")
    a(f"v_lshl_add_u32 v{t+1}, v{t+5}, 2, v{t+1}")
    for w in range(4):
        a(f"ds_read_b32 v{acc+w}, v{t+1} offset:{L_FIN+128*w}")
    a(f"ds_read_b32 v{acc+4}, v{t+1} offset:{L_B}")
    a("s_waitcnt vmcnt(0) lgkmcnt(0)")
    a(f"v_add_f32 v{acc}, v{acc}, v{acc+1}")
    a(f"v_add_f32 v{acc+2}, v{acc+2}, v{acc+3}")
    a(f"v_add_f32 v{acc}, v{acc}, v{acc+2}")
    bf16_round(acc, acc)
    bf16_round(acc + 4, acc + 4)
    a(f"v_lshlrev_b32 v{acc+8}, 16, v{acc+8}")
    a(f"v_add_f32 v{acc}, v{acc+8}, v{acc}")
    bf16_round(acc, acc)
    a(f"v_add_f32 v{acc}, v{acc}, v{acc+4}")
    a(f"v_cvt_pk_bf16_f32 v{acc}, v{acc}, v{acc}")
    a(f"s_mov_b64 exec, s[{sSave}:{sSave+1}]")
    a(f"buffer_store_short v{acc}, v{t+4}, s[{sR1}:{sR1+3}], 0 offen")
    a("s_mov_b64 exec, -1")
    a(f"s_cmp_eq_u32 s{sCB}, 0")
    a("s_cbranch_scc0 L_fin")
    srd(sR0, sWs, off_imm=WS_EPOCH, size=4)
    a(f"v_mov_b32 v{t}, 0")
    a(f"v_mov_b32 v{t+1}, s{sTag}")
    a("s_mov_b64 exec, 1")
    a(f"buffer_store_dword v{t+1}, v{t}, s[{sR0}:{sR0+3}], 0 offen")
    a("s_mov_b64 exec, -1")
    a("L_fin:")
    if stamps:
        stamp(10)
        a("s_waitcnt lgkmcnt(0)")
        a(f"s_lshl_b32 s{sT}, s2, 2")
        a(f"s_add_u32 s{sT}, s{sT}, s{sWave}")
        a(f"s_lshl_b32 s{sT}, s{sT}, 6")
        a(f"s_add_u32 s{sT}, s{sT}, {WS_STAMP}")
        srd(sR0, sWs, off_s=sT, size=64)
        a("v_mov_b32 v28, 0")
        a("s_mov_b64 exec, 1")
        for i in range(11):
            a(f"v_mov_b32 v27, s{sSt+2*i}")
            a(f"buffer_store_dword v27, v28, s[{sR0}:{sR0+3}], 0 offen offset:{4*i}")
            a("s_nop 1")
        a(f"v_mov_b32 v27, s{sSt+5}")
        a(f"buffer_store_dword v27, v28, s[{sR0}:{sR0+3}], 0 offen offset:44")
        a("s_nop 1")
        a(f"s_getreg_b32 s{sT}, hwreg(HW_REG_XCC_ID)")
        a(f"v_mov_b32 v27, s{sT}")
        a(f"buffer_store_dword v27, v28, s[{sR0}:{sR0+3}], 0 offen offset:60")
    a("L_end:")
    a("s_endpgm")

    head = HEADER + f"; @launch grid=(256,1,1) block=(256,1,1) lds={LDS_BYTES}\n" + DOC
    head += '.amdgcn_target "amdgcn-amd-amdhsa--gfx950"\n.text\n'
    head += f".globl {KN}_kernel\n.p2align 8\n.type {KN}_kernel,@function\n"
    tail = f""".section .rodata,"a"
.p2align 6
.amdhsa_kernel {KN}_kernel
  .amdhsa_next_free_vgpr 512
  .amdhsa_next_free_sgpr 102
  .amdhsa_accum_offset 256
  .amdhsa_group_segment_fixed_size 0
  .amdhsa_kernarg_size 96
  .amdhsa_user_sgpr_count 2
  .amdhsa_user_sgpr_kernarg_segment_ptr 1
  .amdhsa_system_sgpr_workgroup_id_x 1
.end_amdhsa_kernel
"""
    return head + a.text() + tail


if __name__ == "__main__":
    import argparse
    ap = argparse.ArgumentParser()
    ap.add_argument("-o", default="k.s")
    ap.add_argument("--G0", type=int, default=6)
    ap.add_argument("--G", type=int, default=2)
    ap.add_argument("--streamers", default="1,2")
    ap.add_argument("--stamps", action="store_true")
    ap.add_argument("--pfi", type=int, default=None)
    ap.add_argument("--a0mode", default="issue")
    ap.add_argument("--exp", default="")
    ap.add_argument("--static", action="store_true")
    ap.add_argument("--sleep_mid", type=int, default=16)
    ap.add_argument("--sleep_tail", type=int, default=1)
    ap.add_argument("--sleep_q", type=int, default=1)
    ap.add_argument("--NPRE", type=int, default=64)
    ap.add_argument("--NPM", type=int, default=48)
    ap.add_argument("--codepf", action="store_true")
    ap.add_argument("--qmask", action="store_true")
    ap.add_argument("--hist", action="store_true")
    ap.add_argument("--pre", type=int, default=0)
    ap.add_argument("--LA2", type=int, default=None)
    ap.add_argument("--LAX", type=int, default=48)
    ap.add_argument("--mflags", default=None)
    ap.add_argument("--GUK", type=int, default=14)
    ap.add_argument("--DNR", type=int, default=16)
    ap.add_argument("--wflags", default="nt")
    ap.add_argument("--noroll", action="store_true")
    ap.add_argument("--LA", type=int, default=6)
    args = ap.parse_args()
    s = gen(G=args.G, G0=args.G0, streamers=tuple(int(x) for x in args.streamers.split(",")), stamps=args.stamps, pfi=args.pfi,
            a0mode=args.a0mode, exp=args.exp, dyn=not args.static, sleep_mid=args.sleep_mid, sleep_tail=args.sleep_tail, sleep_q=args.sleep_q, NPRE=args.NPRE, NPM=args.NPM, codepf=args.codepf, qmask=args.qmask, hist=args.hist, pre_groups=args.pre, LA2=args.LA2, LAX=args.LAX, mflags=args.mflags, GUK=args.GUK, DNR=args.DNR, LA=args.LA, wflags=args.wflags, roll=not args.noroll)
    open(args.o, "w").write(s)
```
